```python
import torch

def _softmax(x, axis=-1):
    return torch.softmax(x, dim=axis)
def _gelu(x):
    return torch.nn.functional.gelu(x, approximate="tanh")
def _silu(x):
    return torch.nn.functional.silu(x)
def _sigmoid(x):
    return torch.sigmoid(x)
def _layernorm(x, axis=-1, eps=1e-5):
    m = x.mean(dim=axis, keepdim=True)
    v = x.var(dim=axis, keepdim=True, unbiased=False)
    return (x - m) / torch.sqrt(v + eps)
def _scatter_add(tgt, idx, src, axis=0):
    return tgt.clone().index_add_(axis, idx, src)
def _segment_sum(src, seg, n):
    out = torch.zeros((n,) + src.shape[1:], dtype=src.dtype)
    return out.index_add_(0, seg, src)
def _pad(x, pw):
    flat = tuple(v for pair in reversed(pw) for v in pair)
    return torch.nn.functional.pad(x, flat)

kernel_name = 'recurrent_scan__gqa_block_cached__dense_activation_relu__decode'

def setup_inputs():

    _w = (lambda a: (lambda t: t.to(torch.bfloat16) if t.is_floating_point() else t)(torch.as_tensor(a)))
    def _A_setup():
        B, Sq, D = 8, 1, 448
        Hq, Hkv, Sk, Dh = 16, 8, 4096, 256
        assert Hq % Hkv == 0, (Hq, Hkv)
        return {
            "x": _w((lambda *s: torch.randn(*s, dtype=torch.bfloat16) * 0.05)(B, Sq, D)),
            "k_cache": _w((lambda *s: torch.randn(*s, dtype=torch.bfloat16) * 0.8)(B, Hkv, Sk, Dh)),
            "v_cache": _w((lambda *s: torch.randn(*s, dtype=torch.bfloat16) * 0.8)(B, Hkv, Sk, Dh)),
            "wq": _w((lambda *s: torch.randn(*s, dtype=torch.bfloat16) * 0.8)(D, Hq * Dh) * (D ** -0.5)),
            "wo": _w((lambda *s: torch.randn(*s, dtype=torch.bfloat16) * 0.8)(Hq * Dh, D) * ((Hq * Dh) ** -0.5)),
        }
    _A_in = _A_setup()

    def _B_setup():
        B, S, D, Dff = 8, 1, 448, 1792
        return {
            "x": _w((lambda *s: torch.randn(*s, dtype=torch.bfloat16) * 0.05)(B, S, D)),
            "w1": _w((lambda *s: torch.randn(*s, dtype=torch.bfloat16) * 0.2)(D, Dff)),
            "w2": _w((lambda *s: torch.randn(*s, dtype=torch.bfloat16) * 0.2)(Dff, D)),
        }
    _B_in = _B_setup()

    return {
        "A_x": _A_in["x"],
        "A_k_cache": _A_in["k_cache"],
        "A_v_cache": _A_in["v_cache"],
        "A_wq": _A_in["wq"],
        "A_wo": _A_in["wo"],
        "B_x": _B_in["x"],
        "B_w1": _B_in["w1"],
        "B_w2": _B_in["w2"],
    }

def reference(A_x, A_k_cache, A_v_cache, A_wq, A_wo, B_x, B_w1, B_w2):
    def _A_ref(x, k_cache, v_cache, wq, wo):
        B, Sq, D = x.shape
        Hq, Dh = 16, 256
        Hkv = k_cache.shape[1]
        rep = Hq // Hkv
        q = (lambda x, *d: x.permute(*d))((x @ wq).reshape(B, Sq, Hq, Dh), 0, 2, 1, 3)
        k = (lambda x, n, axis: torch.repeat_interleave(x, n, dim=axis))(k_cache, rep, axis=1)
        v = (lambda x, n, axis: torch.repeat_interleave(x, n, dim=axis))(v_cache, rep, axis=1)
        scores = torch.einsum("bhqd,bhkd->bhqk", q, k) * (Dh ** -0.5)
        p = _softmax(scores, axis=-1)
        o = torch.einsum("bhqk,bhkd->bhqd", p, v)
        return (lambda x, *d: x.permute(*d))(o, 0, 2, 1, 3).reshape(B, Sq, Hq * Dh) @ wo

    def _B_ref(x, w1, w2):
        h = torch.einsum("bsd,df->bsf", x, w1)
        zero = torch.zeros_like(h)
        h = torch.maximum(h, zero)
        return torch.einsum("bsf,fd->bsd", h, w2)

    x = A_x
    xn = _layernorm(x, axis=-1)
    s = _A_ref(xn, A_k_cache, A_v_cache, A_wq, A_wo)
    g = _silu(_B_ref(xn, B_w1, B_w2))
    return x + s * g
```

```python
import re
_REG = re.compile(r'\b([vsa])(\d+)\b|\b([vsa])\[(\d+):(\d+)\]|\b(vcc|exec|m0|scc)\b')
TRANS = ("v_exp_f32", "v_log_f32", "v_rcp_f32", "v_rsq_f32", "v_sqrt_f32", "v_sin_f32", "v_cos_f32")

def regs_of(op):
    out = []
    for m in _REG.finditer(op):
        if m.group(1): out.append(m.group(1) + m.group(2))
        elif m.group(3): out += [m.group(3) + str(i) for i in range(int(m.group(4)), int(m.group(5)) + 1)]
        else: out.append(m.group(6))
    return out

def split_ops(s):
    ops, depth, cur = [], 0, ""
    for ch in s:
        if ch == '[': depth += 1
        if ch == ']': depth -= 1
        if ch == ',' and depth == 0:
            ops.append(cur.strip()); cur = ""
        else: cur += ch
    if cur.strip(): ops.append(cur.strip())
    return ops

class Emit:
    def __init__(s):
        s.L = []; s.t = 0
        s.mfma_w = {}; s.valu_w = {}; s.trans_w = {}; s.vs_w = {}; s.mfma_c = {}; s.st_d = {}; s.m0_w = -99
        s.maxv = 0; s.maxs = 0
        s.nnop = 0
    def raw(s, text): s.L.append(text)
    def comment(s, text): s.L.append("  ; " + text)
    def nop(s, n):
        while n > 0:
            k = min(n, 16)
            s.L.append(f"  s_nop {k-1}"); s.t += k; n -= k; s.nnop += k
    def _need(s, tp, n):
        return n - (s.t - tp - 1)
    def flush(s):
        need = 0
        for d, n in ((s.mfma_w, 8), (s.valu_w, 2), (s.trans_w, 1), (s.vs_w, 5), (s.mfma_c, 3), (s.st_d, 2)):
            for r, tp in d.items(): need = max(need, s._need(tp, n))
        need = max(need, s._need(s.m0_w, 1))
        s.nop(need)
        s.mfma_w = {}; s.valu_w = {}; s.trans_w = {}; s.vs_w = {}; s.mfma_c = {}; s.st_d = {}
    def label(s, name):
        s.flush(); s.L.append(name + ":")
    def __call__(s, text):
        text = text.strip()
        mn, _, rest = text.partition(" ")
        ops = split_ops(rest)
        mods = ""
        if ops:
            last = ops[-1].split(None, 1)
            if len(last) > 1 and not last[0].endswith(","):
                ops[-1] = last[0]; mods = last[1]
        allr = regs_of(rest)
        for r in allr:
            if r[0] == 'v' and r[1:].isdigit(): s.maxv = max(s.maxv, int(r[1:]) + 1)
            if r[0] == 's' and r[1:].isdigit(): s.maxs = max(s.maxs, int(r[1:]) + 1)
        need = 0
        N = s._need
        if mn.startswith("s_"):
            if mn.startswith("s_cbranch") or mn in ("s_branch", "s_endpgm", "s_setpc_b64"):
                s.flush()
            for r in allr:
                if r in s.vs_w: need = max(need, N(s.vs_w[r], 2))
            s.nop(need)
            s.L.append("  " + text)
            if ops and ops[0] == "m0": s.m0_w = s.t
            if mn == "s_nop": s.t += int(ops[0]) + 1
            else: s.t += 1
            return
        if mn.startswith("v_mfma"):
            d, a, b, c = [regs_of(o) for o in ops[:4]]
            for r in a + b + c:
                if r in s.valu_w: need = max(need, N(s.valu_w[r], 2))
            for r in a + b:
                if r in s.mfma_w: need = max(need, N(s.mfma_w[r], 8))
            if c != d:
                for r in c:
                    if r in s.mfma_w: need = max(need, N(s.mfma_w[r], 6))
                for r in d:
                    if r in s.mfma_w: need = max(need, N(s.mfma_w[r], 6))
            s.nop(need); s.L.append("  " + text)
            for r in d: s.mfma_w[r] = s.t; s.valu_w.pop(r, None)
            for r in c: s.mfma_c[r] = s.t
            s.t += 1
            return
        if mn.startswith("v_"):
            isdpp = "_dpp" in mn
            perml = mn.startswith("v_permlane")
            rdl = mn.startswith("v_readfirstlane") or mn.startswith("v_readlane")
            cmp_ = mn.startswith("v_cmp")
            dst = regs_of(ops[0])
            src = []
            for o in ops[1:]: src += regs_of(o)
            if perml: src += dst; dst = dst + regs_of(ops[1])
            if mn.startswith("v_fmac") or isdpp or mn.startswith("v_writelane"): src += dst
            if mn in ("v_add_co_u32", "v_addc_co_u32", "v_sub_co_u32"): dst = dst + regs_of(ops[1])
            if mn.startswith("v_cndmask") and len(ops) == 3: src.append("vcc")
            for r in src + dst:
                if r in s.mfma_w: need = max(need, N(s.mfma_w[r], 8))
            for r in dst:
                if r in s.mfma_c: need = max(need, N(s.mfma_c[r], 3))
                if r in s.st_d: need = max(need, N(s.st_d[r], 2))
            for r in src:
                if r in s.trans_w: need = max(need, N(s.trans_w[r], 1))
                if r in s.vs_w: need = max(need, N(s.vs_w[r], 4 if rdl else 2))
                if r in s.valu_w:
                    if perml or (isdpp and r in regs_of(ops[1])): need = max(need, N(s.valu_w[r], 2))
                    if rdl: need = max(need, N(s.valu_w[r], 1))
            s.nop(need); s.L.append("  " + text)
            for r in dst:
                if r[0] == 'v' and r != "vcc":
                    s.valu_w[r] = s.t; s.mfma_w.pop(r, None); s.trans_w.pop(r, None)
                    if mn.replace("_e32","").replace("_e64","") in TRANS: s.trans_w[r] = s.t
                else:
                    s.vs_w[r] = s.t
            s.t += 1
            return
        if mn.startswith("buffer_") or mn.startswith("global_") or mn.startswith("ds_"):
            for r in allr:
                if r in s.mfma_w: need = max(need, N(s.mfma_w[r], 8))
                if r in s.vs_w: need = max(need, N(s.vs_w[r], 5))
                if r in s.trans_w: need = max(need, N(s.trans_w[r], 1))
            if " lds" in " " + mods or "load_lds" in mn: need = max(need, N(s.m0_w, 1))
            isload = ("load" in mn or mn.startswith("ds_read") or "permute" in mn) and not (" lds" in " " + mods)
            if isload:
                for r in regs_of(ops[0]):
                    if r in s.mfma_c: need = max(need, N(s.mfma_c[r], 3))
                    if r in s.st_d: need = max(need, N(s.st_d[r], 2))
            s.nop(need); s.L.append("  " + text)
            if "store" in mn and ("x4" in mn or "x3" in mn):
                dop = ops[0] if mn.startswith("buffer_") else ops[1]
                for r in regs_of(dop): s.st_d[r] = s.t
            if isload:
                for r in regs_of(ops[0]): s.valu_w.pop(r, None); s.mfma_w.pop(r, None)
            s.t += 1
            return
        raise ValueError("unknown instr: " + text)
    def text(s): return "\n".join(s.L) + "\n"
```

```python
import sys, math
from emit import Emit
KN = "recurrent_scan__gqa_block_cached__dense_activation_relu__decode_kernel"
QWS = 0x1000; HWS = 0x50000; FWS = 0x70000; SWS = 0xB0000; OWS = 0x100000; YWS = 0x200000; WS_SIZE = 0x300000
L_W2 = 0x20000; L_Q = 0x21C00; L_O = 0x22000; L_S = 0x24000; L_FLAG = 0x24040; LDS_SIZE = 0x24100
SPIN_MAX = 1 << 17
def f32(x):
    import struct
    return "0x%08x" % struct.unpack("<I", struct.pack("<f", x))[0]

def gen(B=52, W=8, LMIN=4, stamps=False, wflag="", kvflag="nt", catch=2):
    e = Emit()
    A = e
    e.raw(f"; @launch grid=(256,1,1) block=(512,1,1) lds={LDS_SIZE}")
    e.raw('.amdgcn_target "amdgcn-amd-amdhsa--gfx950"')
    e.raw(".text"); e.raw(f".globl {KN}"); e.raw(".p2align 8"); e.raw(f".type {KN},@function"); e.raw(f"{KN}:")
    uid = [0]
    def L(name):
        uid[0] += 1
        return f"L_{name}_{uid[0]}"
    def stamp(i):
        if not stamps: return
        A(f"s_memrealtime s[{86+2*i}:{87+2*i}]")
        A("s_waitcnt lgkmcnt(0)")
    NST = 1 if stamps else 0

    def srd(d, lo, hi, size, add=None):
        if add is None:
            A(f"s_mov_b32 s{d}, s{lo}"); A(f"s_and_b32 s{d+1}, s{hi}, 0xffff")
        else:
            A(f"s_add_u32 s{d}, s{lo}, {add}"); A(f"s_addc_u32 s{d+1}, s{hi}, 0"); A(f"s_and_b32 s{d+1}, s{d+1}, 0xffff")
        A(f"s_mov_b32 s{d+2}, {size}"); A(f"s_mov_b32 s{d+3}, 0x20000")
    def tags():
        A("s_add_u32 s56, s38, 1"); A("s_add_u32 s58, s39, 1"); A("s_and_b32 s57, s58, 0xff")
        A("s_mov_b32 s59, 0xffffff00")
    def bf16r(d, s):
        A(f"v_cvt_pk_bf16_f32 {d}, {s}, {s}"); A(f"v_lshlrev_b32 {d}, 16, {d}")
    def check(grans, acc_a, acc_b, tmp1, tmp2):
        first = True
        for i in range(0, len(grans), 2):
            pair = grans[i:i+2]
            (a0, a1) = pair[0]
            (b0, b1) = pair[1] if len(pair) > 1 else pair[0]
            A(f"v_xor_b32 v{tmp1}, s56, v{a1}"); A(f"v_xor_b32 v{tmp2}, s56, v{b1}")
            if first: A(f"v_or_b32 v{acc_a}, v{tmp1}, v{tmp2}")
            else: A(f"v_or3_b32 v{acc_a}, v{acc_a}, v{tmp1}, v{tmp2}")
            A(f"v_xor_b32 v{tmp1}, s57, v{a0}"); A(f"v_xor_b32 v{tmp2}, s57, v{b0}")
            if first: A(f"v_or_b32 v{acc_b}, v{tmp1}, v{tmp2}")
            else: A(f"v_or3_b32 v{acc_b}, v{acc_b}, v{tmp1}, v{tmp2}")
            first = False
        A(f"v_and_b32 v{acc_b}, 0xff, v{acc_b}"); A(f"v_or_b32 v{acc_a}, v{acc_a}, v{acc_b}")
        A(f"v_cmp_ne_u32 vcc, 0, v{acc_a}")
    def poll(name, loads, grans, regs4, sleep=2):
        lp = L(name); done = L(name + "_ok")
        A("s_mov_b32 s80, 0")
        e.label(lp)
        loads()
        A("s_waitcnt vmcnt(0)")
        check(grans, *regs4)
        A(f"s_cbranch_vccz {done}")
        A("s_add_u32 s80, s80, 1"); A(f"s_cmp_ge_u32 s80, {SPIN_MAX}"); A(f"s_cbranch_scc1 {done}")
        if sleep: A(f"s_sleep {sleep}")
        A(f"s_branch {lp}")
        e.label(done)
    def xreduce(op, v, t1, t2, steps):
        for st in steps:
            if st == 1: A(f"{op}_dpp v{v}, v{v}, v{v} quad_perm:[1,0,3,2] row_mask:0xf bank_mask:0xf")
            elif st == 2: A(f"{op}_dpp v{v}, v{v}, v{v} quad_perm:[2,3,0,1] row_mask:0xf bank_mask:0xf")
            elif st == 4: A(f"{op}_dpp v{v}, v{v}, v{v} row_half_mirror row_mask:0xf bank_mask:0xf")
            elif st == 8: A(f"{op}_dpp v{v}, v{v}, v{v} row_ror:8 row_mask:0xf bank_mask:0xf")
            elif st in (16, 32):
                A(f"v_mov_b32 v{t1}, v{v}"); A(f"v_mov_b32 v{t2}, v{v}")
                A(f"v_permlane{st}_swap_b32 v{t1}, v{t2}")
                A(f"{op} v{v}, v{t1}, v{t2}")

    A("s_cmp_ge_u32 s2, 256"); A("s_cbranch_scc1 L_end")
    A("s_load_dwordx16 s[16:31], s[0:1], 0")
    A("s_load_dwordx4 s[32:35], s[0:1], 64")
    A("s_load_dwordx2 s[36:37], s[0:1], 80")
    if stamps:
        A("s_memrealtime s[86:87]")
        for i in range(88, 102): A(f"s_mov_b32 s{i}, 0")
    A("v_lshrrev_b32 v1, 6, v0"); A("v_readfirstlane_b32 s3, v1"); A("v_and_b32 v0, 63, v0")
    A("s_and_b32 s4, s2, 7"); A("s_lshr_b32 s5, s2, 3"); A("s_lshr_b32 s6, s5, 2"); A("s_and_b32 s7, s5, 3")
    A("s_lshl_b32 s8, s6, 3"); A("s_add_u32 s8, s8, s4")
    A("s_lshl_b32 s9, s8, 2"); A("s_add_u32 s9, s9, s7")
    A("s_cmp_ge_u32 s3, 4"); A("s_cbranch_scc1 L_helper")

    def combine_setup(vpos, vk):
        A("s_lshr_b32 s70, s3, 2"); A("s_bfe_u32 s71, s3, 0x10001"); A("s_and_b32 s72, s3, 1")
        A("s_lshl_b32 s73, s71, 10")
        A("s_lshl_b32 s74, s72, 9"); A("s_add_u32 s73, s73, s74")
        A("s_lshl_b32 s74, s70, 7"); A("s_add_u32 s73, s73, s74")
        A(f"s_add_u32 s73, s73, {L_O}")
        A(f"v_lshrrev_b32 v{vpos}, 5, v0"); A(f"v_lshlrev_b32 v{vpos}, 8, v{vpos}")
        A(f"v_and_b32 v{vk}, 7, v0"); A(f"v_lshl_add_u32 v{vpos}, v{vk}, 4, v{vpos}")
        A(f"v_bfe_u32 v{vk}, v0, 3, 2"); A(f"v_lshl_add_u32 v{vpos}, v{vk}, 2, v{vpos}")
        A(f"v_add_u32 v{vpos}, s73, v{vpos}")
        A("s_lshl_b32 s73, s9, 12"); A("s_lshl_b32 s74, s3, 9"); A("s_add_u32 s73, s73, s74"); A(f"s_add_u32 s73, s73, {OWS}")
        A(f"v_lshlrev_b32 v{vk}, 3, v0"); A(f"v_add_u32 v{vk}, s73, v{vk}")
    VPOS, VKO = 38, 39

    BUF0 = 40
    def buf(n): r = BUF0 + 4 * (n % B); return f"v[{r}:{r+3}]"
    A("v_lshrrev_b32 v3, 4, v0")
    A("v_bfe_u32 v4, v0, 2, 2"); A("v_and_b32 v5, 3, v0")
    A("v_lshlrev_b32 v1, 9, v4"); A("v_lshl_add_u32 v1, v3, 6, v1"); A("v_lshl_add_u32 v1, v5, 4, v1")
    A("v_and_b32 v5, 15, v0"); A("v_lshlrev_b32 v2, 9, v3"); A("v_lshl_add_u32 v2, v5, 4, v2")
    A("s_lshl_b32 s10, s9, 19"); A("s_lshl_b32 s11, s3, 11"); A("s_mov_b32 s12, s11")
    A("s_waitcnt lgkmcnt(0)")
    srd(40, 18, 19, 0x80000, "s10"); srd(44, 20, 21, 0x80000, "s10")
    A("s_load_dwordx2 s[38:39], s[36:37], 0")
    st = dict(ni=0, landed=0)
    def wait_landed(n):
        if st['landed'] >= n: return
        A(f"s_waitcnt vmcnt({st['ni'] - n})"); st['landed'] = n
    def issue(pace=True):
        n = st['ni']
        if pace and n >= W: wait_landed(n - W + 1)
        half = n & 1
        if n < 128:
            A(f"buffer_load_dwordx4 {buf(n)}, v1, s[40:43], s11 offen offset:{half*256} {kvflag}")
            if half: A("s_add_u32 s11, s11, 8192")
        else:
            A(f"buffer_load_dwordx4 {buf(n)}, v2, s[44:47], s12 offen offset:{half*256} {kvflag}")
            if half: A("s_add_u32 s12, s12, 8192")
        st['ni'] += 1
    for _ in range(W): issue()
    srd(48, 36, 37, WS_SIZE)
    for j in range(8):
        A(f"s_mov_b32 s{60+2*j}, {0x01010101 << j}"); A(f"s_mov_b32 s{61+2*j}, {0x01010101 << j}")
    A("v_and_b32 v32, 1, v0"); A("v_cmp_eq_u32 vcc, 1, v32")
    A("v_mov_b32 v33, 0xffff"); A("v_mov_b32 v34, 0xffff0000"); A("v_cndmask_b32 v33, v33, v34, vcc")
    A("v_bfe_u32 v32, v0, 1, 2")
    for r in range(4):
        A(f"v_cmp_eq_u32 vcc, {r}, v32"); A(f"v_cndmask_b32 v{4+r}, 0, v33, vcc")
    A("v_bfe_u32 v32, v0, 3, 1"); A("v_lshlrev_b32 v36, 9, v32"); A("v_lshl_add_u32 v36, v3, 6, v36")
    A("v_and_b32 v32, 3, v0"); A("v_lshl_add_u32 v36, v32, 4, v36"); A(f"v_add_u32 v36, {L_Q}, v36")
    A(f"v_mov_b32 v37, {L_FLAG}")
    A("s_waitcnt lgkmcnt(0)")
    tags()
    A("s_barrier")
    while st['ni'] < B: issue()
    lp = L("qwait"); ok = L("qok")
    e.label(lp)
    A("ds_read_b32 v32, v37"); A("s_waitcnt lgkmcnt(0)"); A("v_readfirstlane_b32 s13, v32")
    A("s_cmp_lg_u32 s13, 0"); A(f"s_cbranch_scc1 {ok}"); A("s_sleep 1"); A(f"s_branch {lp}")
    e.label(ok)
    A("ds_read_b128 v[8:11], v36"); A("ds_read_b128 v[12:15], v36 offset:256")
    stamp(1)
    A("s_waitcnt lgkmcnt(0)")
    P = lambda r: 24 + r
    def kred(c):
        D = 16 + 4 * (c & 1)
        A(f"v_mov_b32_dpp v32, v{D} quad_perm:[0,0,0,0] row_mask:0xf bank_mask:0xf")
        for i in (1, 2, 3):
            A(f"v_add_f32_dpp v32, v{D+i}, v32 quad_perm:[{i},{i},{i},{i}] row_mask:0xf bank_mask:0xf")
        j = c & 7
        if j == 0: A(f"v_mov_b32 v{P(c>>3)}, v32")
        else: A(f"v_cndmask_b32 v{P(c>>3)}, v{P(c>>3)}, v32, s[{60+2*j}:{61+2*j}]")
    def kcons(c):
        D = 16 + 4 * (c & 1)
        wait_landed(2 * c + 2)
        A(f"v_mfma_f32_16x16x32_bf16 v[{D}:{D+3}], {buf(2*c)}, v[8:11], 0")
        A(f"v_mfma_f32_16x16x32_bf16 v[{D}:{D+3}], {buf(2*c+1)}, v[12:15], v[{D}:{D+3}]")
        if c > 0: kred(c - 1)
    def vprep(c):
        j = c & 7; r = c >> 3; pb = 32 + (c & 1); Bs = 8 + 4 * (c & 1)
        A(f"v_mov_b32_dpp v{pb}, v{P(r)} row_newbcast:{j} row_mask:0xf bank_mask:0x3")
        A(f"v_mov_b32_dpp v{pb}, v{P(r)} row_newbcast:{8+j} row_mask:0xf bank_mask:0xc")
        for i in range(4): A(f"v_and_b32 v{Bs+i}, v{pb}, v{4+i}")
    def vcons(c):
        Bs = 8 + 4 * (c & 1)
        wait_landed(128 + 2 * c + 2)
        for dh in range(2):
            O = 16 + 4 * dh
            C = "0" if c == 0 else f"v[{O}:{O+3}]"
            A(f"v_mfma_f32_16x16x32_bf16 v[{O}:{O+3}], {buf(128+2*c+dh)}, v[{Bs}:{Bs+3}], {C}")
        if c + 1 < 64: vprep(c + 1)
    def softmax():
        kred(63)
        A(f"v_max3_f32 v34, v{P(0)}, v{P(1)}, v{P(2)}"); A(f"v_max3_f32 v34, v34, v{P(3)}, v{P(4)}")
        A(f"v_max3_f32 v34, v34, v{P(5)}, v{P(6)}"); A(f"v_max_f32 v34, v34, v{P(7)}")
        xreduce("v_max_f32", 34, 32, 33, (1, 2, 4, 16, 32))
        A(f"s_mov_b32 s13, {f32(math.log2(math.e) / 16.0)}")
        A("v_mul_f32 v34, s13, v34")
        for r in range(8):
            A(f"v_fma_f32 v{P(r)}, v{P(r)}, s13, -v34")
        for r in range(8):
            A(f"v_exp_f32 v{P(r)}, v{P(r)}")
        A(f"v_add_f32 v35, v{P(0)}, v{P(1)}")
        for r in range(2, 8): A(f"v_add_f32 v35, v35, v{P(r)}")
        for r in range(8): A(f"v_cvt_pk_bf16_f32 v{P(r)}, v{P(r)}, v{P(r)}")
        xreduce("v_add_f32", 35, 32, 33, (1, 2, 4, 16, 32))
        combine_setup(VPOS, VKO)
        A("s_lshl_b32 s13, s3, 11"); A(f"s_add_u32 s13, s13, {L_O}")
        A("v_lshlrev_b32 v36, 4, v0"); A("v_add_u32 v36, s13, v36")
        A("v_bfe_u32 v37, v0, 3, 1"); A("v_lshlrev_b32 v37, 5, v37"); A("s_lshl_b32 s13, s3, 3"); A(f"s_add_u32 s13, s13, {L_S}"); A("v_add_u32 v37, s13, v37")
        A("ds_write_b64 v37, v[34:35]")
        stamp(3)
        vprep(0)
    nc = 0
    def consume():
        nonlocal nc
        if nc < 64: kcons(nc)
        else:
            if nc == 64: softmax()
            vcons(nc - 64)
        nc += 1
    while nc < 128:
        lag = st['ni'] // 2 - nc
        consume()
        if lag > LMIN:
            for _ in range(catch - 1):
                if nc < 128 and st['ni'] // 2 - nc > LMIN: consume()
        for _ in range(2):
            if st['ni'] < 256 and (st['ni'] - B) // 2 < nc: issue()
    A("ds_write_b128 v36, v[16:19]"); A("ds_write_b128 v36, v[20:23] offset:1024")
    stamp(2)
    A("s_branch L_bar2")

    e.label("L_helper")
    A("s_sub_u32 s15, s3, 4")
    A("v_lshrrev_b32 v3, 4, v0")
    A("v_bfe_u32 v4, v0, 2, 2")
    A("v_and_b32 v5, 3, v0")
    A("v_and_b32 v6, 15, v0")
    A("v_mov_b32 v7, 0"); A("v_mov_b32 v12, 0")
    A("s_waitcnt lgkmcnt(0)")
    A("s_load_dwordx2 s[38:39], s[36:37], 0")
    srd(48, 36, 37, WS_SIZE)
    A("s_cmp_eq_u32 s3, 6"); A("s_cbranch_scc1 L_h2")
    A("s_cmp_eq_u32 s3, 7"); A("s_cbranch_scc1 L_h3")
    A("s_cmp_eq_u32 s3, 5"); A("s_cbranch_scc1 L_h1")
    srd(40, 22, 23, 448 * 8192)
    A("s_mov_b32 s10, 8192")
    A("s_lshl_b32 s11, s4, 10"); A("s_lshl_b32 s12, s5, 5"); A("s_add_u32 s11, s11, s12")
    A("s_lshl_b32 s13, s4, 15"); A("s_lshl_b32 s12, s5, 7"); A("s_add_u32 s13, s13, s12"); A(f"s_add_u32 s13, s13, {QWS}")
    A("s_mov_b32 s14, 4096"); A("s_mov_b32 s81, 0xff800000")
    A("s_branch L_gemv")
    e.label("L_h1")
    A("s_cmp_lt_u32 s2, 112"); A("s_cbranch_scc1 L_h1go")
    A("s_waitcnt lgkmcnt(0)"); tags(); A("s_barrier"); A("s_branch L_wo")
    e.label("L_h1go")
    srd(40, 28, 29, 448 * 3584)
    A("s_mov_b32 s10, 3584")
    A("s_lshl_b32 s11, s2, 5")
    A("s_lshl_b32 s13, s2, 7"); A(f"s_add_u32 s13, s13, {HWS}")
    A("s_mov_b32 s14, 14336"); A("s_mov_b32 s81, 0")
    e.label("L_gemv")
    srd(44, 16, 17, 7168)
    XF = lambda ks: 64 + 4 * ks
    BF = lambda ks: 128 + 4 * ks
    A("v_and_b32 v7, 7, v0"); A("v_mul_u32_u24 v7, 896, v7"); A("v_lshl_add_u32 v7, v3, 4, v7")
    A("s_mov_b32 s70, 0x00ff00ff"); A("s_mov_b32 s71, 0x00ff00ff")
    A("s_mov_b64 exec, s[70:71]")
    for ks in range(14):
        A(f"buffer_load_dwordx4 v[{XF(ks)}:{XF(ks)+3}], v7, s[44:47], 0 offen offset:{ks*64}")
    A("s_mov_b64 exec, -1")
    A("v_lshrrev_b32 v8, 1, v0"); A("v_mul_lo_u32 v8, v8, s10"); A("v_and_b32 v9, 1, v0"); A("v_lshl_add_u32 v8, v9, 4, v8")
    A("s_lshl_b32 s12, s15, 15")
    A("s_lshl_b32 s72, s10, 5")
    A("s_mov_b32 s73, s12")
    for i in range(14):
        A("s_mov_b32 m0, s73")
        A(f"buffer_load_dwordx4 v8, s[40:43], s11 offen {wflag} lds")
        A("s_add_u32 s73, s73, 1024"); A("s_add_u32 s11, s11, s72")
    A("s_not_b64 exec, s[70:71]")
    for ks in range(14):
        for i in range(4): A(f"v_mov_b32 v{XF(ks)+i}, 0x3f803f80")
    A("s_mov_b64 exec, -1")
    A("v_lshl_add_u32 v9, v3, 3, v4"); A("v_lshlrev_b32 v9, 5, v9"); A("v_lshl_add_u32 v9, v5, 3, v9"); A("v_add_u32 v9, s12, v9")
    A("s_lshl_b32 s72, s14, 2"); A("v_mul_lo_u32 v10, v3, s72"); A("v_lshl_add_u32 v10, v6, 3, v10"); A("v_add_u32 v10, s13, v10")
    A("s_waitcnt lgkmcnt(0)"); tags(); A("s_barrier")
    A("v_mov_b32 v11, s57")
    A("s_waitcnt vmcnt(14)")
    for ks in range(14):
        C = "0" if ks == 0 else "v[16:19]"
        A(f"v_mfma_f32_16x16x32_bf16 v[16:19], v[{XF(ks)}:{XF(ks)+3}], v[{XF(ks)}:{XF(ks)+3}], {C}")
    A("s_waitcnt vmcnt(0)")
    for ks in range(14):
        A(f"ds_read_b64_tr_b16 v[{BF(ks)}:{BF(ks)+1}], v9 offset:{ks*1024}")
        A(f"ds_read_b64_tr_b16 v[{BF(ks)+2}:{BF(ks)+3}], v9 offset:{ks*1024+128}")
        if ks >= 6:
            k2 = ks - 6
            A("s_waitcnt lgkmcnt(12)")
            C = "0" if k2 == 0 else "v[20:23]"
            A(f"v_mfma_f32_16x16x32_bf16 v[20:23], v[{XF(k2)}:{XF(k2)+3}], v[{BF(k2)}:{BF(k2)+3}], {C}")
    for k2 in range(8, 14):
        A(f"s_waitcnt lgkmcnt({2*(13-k2)})")
        A(f"v_mfma_f32_16x16x32_bf16 v[20:23], v[{XF(k2)}:{XF(k2)+3}], v[{BF(k2)}:{BF(k2)+3}], v[20:23]")
    A(f"s_mov_b32 s72, {f32(1.0/448.0)}"); A(f"s_mov_b32 s73, {f32(1e-5)}")
    for i in range(4):
        A(f"v_mov_b32_dpp v{24+i}, v{16+i} row_newbcast:8 row_mask:0xf bank_mask:0xf")
        A(f"v_mov_b32_dpp v{28+i}, v{16+i} row_newbcast:{i} row_mask:0xf bank_mask:0xf")
        A(f"v_mov_b32_dpp v{28+i}, v{16+i} row_newbcast:{4+i} row_mask:0x2 bank_mask:0xf")
    for i in range(4):
        A(f"v_mul_f32 v{24+i}, s72, v{24+i}")
        A(f"v_mul_f32 v{28+i}, s72, v{28+i}")
    for i in range(4):
        A(f"v_fma_f32 v{28+i}, -v{24+i}, v{24+i}, v{28+i}")
        A(f"v_max_f32 v{28+i}, 0, v{28+i}")
    for i in range(4): bf16r(f"v{28+i}", f"v{28+i}")
    for i in range(4): A(f"v_add_f32 v{28+i}, s73, v{28+i}")
    for i in range(4): bf16r(f"v{28+i}", f"v{28+i}")
    for i in range(4): A(f"v_sqrt_f32 v{28+i}, v{28+i}")
    for i in range(4): bf16r(f"v{28+i}", f"v{28+i}")
    for i in range(4): A(f"v_rcp_f32 v{28+i}, v{28+i}")
    for i in range(4): bf16r(f"v{24+i}", f"v{24+i}")
    A("v_mov_b32 v32, v20"); A("v_mov_b32 v33, v20"); A("v_permlane32_swap_b32 v32, v33")
    for i in range(4):
        A(f"v_fma_f32 v{20+i}, -v{24+i}, v33, v{20+i}")
        A(f"v_mul_f32 v{20+i}, v{20+i}, v{28+i}")
        A(f"v_max_f32 v{20+i}, s81, v{20+i}")
    for i in range(4):
        bf16r(f"v{20+i}", f"v{20+i}")
        A(f"v_or_b32 v{40+2*i}, v{20+i}, v11"); A(f"v_mov_b32 v{41+2*i}, s56")
    A("s_mov_b32 s70, -1"); A("s_mov_b32 s71, 0"); A("s_mov_b64 exec, s[70:71]")
    for i in range(4):
        A(f"buffer_store_dwordx2 v[{40+2*i}:{41+2*i}], v10, s[48:51], 0 offen sc1")
        if i < 3: A("v_add_u32 v10, s14, v10")
    A("s_mov_b64 exec, -1")
    stamp(1)
    A("s_branch L_wo")

    e.label("L_h2")
    A(f"v_mov_b32 v7, {L_FLAG}"); A("v_mov_b32 v8, 0"); A("ds_write_b32 v7, v8")
    A("s_lshl_b32 s10, s4, 3"); A("s_add_u32 s10, s10, s6"); A("s_lshl_b32 s10, s10, 12"); A(f"s_add_u32 s10, s10, {QWS}")
    A("v_lshlrev_b32 v8, 4, v0"); A("v_lshlrev_b32 v9, 2, v0"); A(f"v_add_u32 v9, {L_Q}, v9")
    A("s_mov_b32 s72, 0x07060302")
    A("s_waitcnt lgkmcnt(0)"); tags(); A("s_barrier")
    def qloads():
        for t in range(4):
            A(f"buffer_load_dwordx4 v[{16+4*t}:{19+4*t}], v8, s[48:51], s10 offen offset:{t*1024} sc1")
    poll("qpoll", qloads, [(16 + 2 * i, 17 + 2 * i) for i in range(8)], (32, 33, 34, 35), sleep=1)
    for t in range(4):
        A(f"v_perm_b32 v{36+t}, v{18+4*t}, v{16+4*t}, s72")
        A(f"ds_write_b32 v9, v{36+t} offset:{t*256}")
    A("s_waitcnt lgkmcnt(0)")
    A("v_mov_b32 v8, 1"); A("ds_write_b32 v7, v8")
    stamp(1)
    A("s_branch L_wo")

    e.label("L_h3")
    A("s_waitcnt lgkmcnt(0)"); tags(); A("s_barrier")
    A("s_cmp_lt_u32 s2, 32"); A("s_cbranch_scc1 L_wo")
    A("s_sub_u32 s82, s2, 32"); A("s_mul_i32 s83, s82, 2341"); A("s_lshr_b32 s83, s83, 16")
    A("s_mul_i32 s84, s83, 28"); A("s_sub_u32 s84, s82, s84")
    srd(40, 30, 31, 1792 * 896)
    A("v_lshrrev_b32 v8, 1, v0"); A("v_mul_u32_u24 v8, 896, v8"); A("v_and_b32 v9, 1, v0"); A("v_lshl_add_u32 v8, v9, 4, v8")
    A(f"s_mul_i32 s11, s83, {224*896}"); A("s_lshl_b32 s12, s84, 5"); A("s_add_u32 s11, s11, s12")
    for i in range(7):
        A(f"s_mov_b32 m0, {L_W2 + i*1024}")
        A(f"buffer_load_dwordx4 v8, s[40:43], s11 offen {wflag} lds")
        A(f"s_add_u32 s11, s11, {32*896}")

    e.label("L_wo")
    WF = lambda tt, cbk: 128 + 4 * (tt * 7 + cbk)
    srd(40, 24, 25, 4096 * 896)
    A("v_mul_u32_u24 v8, 896, v3"); A("v_lshl_add_u32 v8, v6, 4, v8")
    A("s_lshl_b32 s11, s4, 2"); A("s_add_u32 s11, s11, s15"); A(f"s_mul_i32 s11, s11, {128*896}")
    A("s_mul_i32 s12, s7, 224"); A("s_add_u32 s11, s11, s12")
    A("s_lshl_b32 s12, s15, 15"); A("s_mov_b32 s73, s12")
    A("s_waitcnt vmcnt(0) lgkmcnt(0)")
    for i in range(32):
        if i >= 8: A("s_waitcnt vmcnt(7)")
        A("s_mov_b32 m0, s73")
        A(f"buffer_load_dwordx4 v8, s[40:43], s11 offen {wflag} lds")
        A("s_add_u32 s73, s73, 1024"); A(f"s_add_u32 s11, s11, {4*896}")
    A("v_lshl_add_u32 v9, v3, 3, v4"); A("v_lshlrev_b32 v9, 8, v9"); A("v_lshl_add_u32 v9, v5, 3, v9"); A("v_add_u32 v9, s12, v9")
    A("s_waitcnt vmcnt(0)")
    n = 0
    for tt in range(4):
        for cbk in range(7):
            w = WF(tt, cbk)
            if n >= 6: A("s_waitcnt lgkmcnt(10)")
            A(f"ds_read_b64_tr_b16 v[{w}:{w+1}], v9 offset:{tt*8192+cbk*32}")
            A(f"ds_read_b64_tr_b16 v[{w+2}:{w+3}], v9 offset:{tt*8192+cbk*32+1024}")
            n += 1
    A("s_waitcnt lgkmcnt(0)")
    stamp(2)
    A("s_cmp_lg_u32 s3, 7"); A("s_cbranch_scc1 L_hpre")
    A("s_cmp_lt_u32 s2, 32"); A("s_cbranch_scc1 L_fg")
    A("v_and_b32 v7, 7, v0"); A("v_mul_u32_u24 v7, 14336, v7"); A("v_lshl_add_u32 v7, v3, 6, v7")
    A(f"s_mul_i32 s10, s83, {224*8}"); A(f"s_add_u32 s10, s10, {HWS}")
    A("s_mov_b32 s72, 0x07060302")
    def hloads():
        for k in range(7):
            for q in range(4):
                r = 16 + 16 * k + 4 * q
                A(f"buffer_load_dwordx4 v[{r}:{r+3}], v7, s[48:51], s10 offen offset:{k*256+q*16} sc1")
    poll("hpoll", hloads, [(16 + 2 * i, 17 + 2 * i) for i in range(56)], (8, 9, 10, 11), sleep=8)
    for k in range(7):
        for q in range(4):
            r = 16 + 16 * k + 4 * q
            A(f"v_perm_b32 v{16+16*k+q}, v{r+2}, v{r}, s72")
    A("v_lshl_add_u32 v9, v3, 3, v4"); A("v_lshlrev_b32 v9, 5, v9"); A("v_lshl_add_u32 v9, v5, 3, v9"); A(f"v_add_u32 v9, {L_W2}, v9")
    for k in range(7):
        r = 16 + 16 * k + 4
        A(f"ds_read_b64_tr_b16 v[{r}:{r+1}], v9 offset:{k*1024}")
        A(f"ds_read_b64_tr_b16 v[{r+2}:{r+3}], v9 offset:{k*1024+128}")
    A("s_waitcnt lgkmcnt(0)")
    for k in range(7):
        r = 16 + 16 * k
        C = "0" if k == 0 else "v[8:11]"
        A(f"v_mfma_f32_16x16x32_bf16 v[8:11], v[{r}:{r+3}], v[{r+4}:{r+7}], {C}")
    A("s_lshl_b32 s10, s84, 3"); A("s_add_u32 s10, s10, s83"); A("s_lshl_b32 s10, s10, 7"); A(f"s_add_u32 s10, s10, {FWS}")
    A(f"v_mul_u32_u24 v7, {4*28672}, v3"); A("v_lshl_add_u32 v7, v6, 3, v7")
    A("v_mov_b32 v12, s57")
    for i in range(4):
        A(f"v_and_or_b32 v{16+2*i}, v{8+i}, s59, v12"); A(f"v_mov_b32 v{17+2*i}, s56")
    A("s_mov_b32 s70, -1"); A("s_mov_b32 s71, 0"); A("s_mov_b64 exec, s[70:71]")
    for i in range(4):
        A(f"buffer_store_dwordx2 v[{16+2*i}:{17+2*i}], v7, s[48:51], s10 offen sc1")
        if i < 3: A(f"v_add_u32 v7, 28672, v7")
    A("s_mov_b64 exec, -1")
    e.label("L_fg")
    A("s_cmp_eq_u32 s4, 7"); A("s_cbranch_scc1 L_hpre")
    A("s_mul_i32 s85, s7, 7"); A("s_add_u32 s85, s85, s4")
    A("s_mul_i32 s84, s6, 28"); A("s_add_u32 s84, s84, s85")
    A("s_lshl_b32 s10, s84, 10"); A(f"s_add_u32 s10, s10, {FWS}")
    A("v_lshlrev_b32 v7, 4, v0")
    srd(44, 16, 17, 7168)
    A("v_and_b32 v12, 7, v0"); A("v_lshlrev_b32 v12, 2, v12"); A("s_lshl_b32 s11, s84, 5"); A("v_add_u32 v12, s11, v12")
    A("buffer_load_dword v13, v12, s[44:47], 0 offen")
    def floads():
        A("buffer_load_dwordx4 v[16:19], v7, s[48:51], s10 offen sc1")
    poll("fpoll", floads, [(16, 17), (18, 19)], (8, 9, 10, 11), sleep=8)
    xreduce("v_add_f32", 16, 8, 9, (8, 16, 32)); xreduce("v_add_f32", 18, 10, 11, (8, 16, 32))
    A(f"s_mov_b32 s72, {f32(-math.log2(math.e))}")
    for (f, g) in ((16, 14), (18, 15)):
        bf16r(f"v{f}", f"v{f}")
        A(f"v_mul_f32 v8, s72, v{f}"); A("v_exp_f32 v8, v8"); A("v_add_f32 v8, 1.0, v8"); A("v_rcp_f32 v8, v8")
        A(f"v_mul_f32 v{g}, v{f}, v8"); bf16r(f"v{g}", f"v{g}")
    stamp(3)
    e.label("L_hpre")
    combine_setup(VPOS, VKO)
    A("s_lshl_b32 s76, s8, 14"); A("s_lshl_b32 s72, s15, 10"); A("s_add_u32 s76, s76, s72"); A(f"s_add_u32 s76, s76, {OWS}")
    A("s_add_u32 s77, s76, 4096"); A("s_add_u32 s78, s76, 8192"); A("s_add_u32 s79, s76, 12288")
    A("v_lshlrev_b32 v40, 8, v4"); A("v_lshl_add_u32 v40, v3, 6, v40"); A("v_lshl_add_u32 v40, v5, 4, v40")
    A("s_lshl_b32 s72, s8, 7"); A("s_lshr_b32 s73, s15, 1"); A("s_lshl_b32 s73, s73, 4"); A("s_add_u32 s72, s72, s73"); A(f"s_add_u32 s72, s72, {SWS}")
    A("v_lshlrev_b32 v41, 5, v5"); A("v_add_u32 v41, s72, v41")
    A("s_mul_i32 s72, s6, 28"); A("s_mul_i32 s73, s7, 7"); A("s_add_u32 s72, s72, s73"); A("s_lshl_b32 s72, s72, 12")
    A("s_lshl_b32 s73, s4, 9"); A("s_add_u32 s72, s72, s73"); A("s_lshl_b32 s73, s15, 7"); A("s_add_u32 s72, s72, s73"); A(f"s_add_u32 s72, s72, {YWS}")
    A("v_lshlrev_b32 v42, 12, v3"); A("v_lshl_add_u32 v42, v6, 3, v42"); A("v_add_u32 v42, s72, v42")
    A("v_add_u32 v43, 16384, v42")
    A("s_mov_b32 s60, 0xffff0000"); A("s_mov_b32 s61, 0"); A("s_mov_b32 s62, 0"); A("s_mov_b32 s63, 0xffff"); A("s_mov_b32 s64, 0"); A("s_mov_b32 s65, 0xffff0000")

    e.label("L_bar2")
    A("s_lshr_b32 s70, s3, 2"); A("s_lshl_b32 s71, s70, 5"); A(f"s_add_u32 s71, s71, {L_S}"); A("v_mov_b32 v37, s71")
    A("v_mov_b32 v36, s57")
    A("s_waitcnt lgkmcnt(0)")
    A("s_barrier")
    A("ds_read_b128 v[24:27], v37"); A("ds_read_b128 v[28:31], v37 offset:16")
    for w in range(4): A(f"ds_read_b32 v{16+w}, v{VPOS} offset:{w*2048}")
    A("s_waitcnt lgkmcnt(4)")
    A("v_max3_f32 v20, v24, v26, v28"); A("v_max_f32 v20, v20, v30"); A("v_and_b32 v20, s59, v20")
    for w in range(4): A(f"v_sub_f32 v{24+2*w}, v{24+2*w}, v20")
    for w in range(4): A(f"v_exp_f32 v{24+2*w}, v{24+2*w}")
    A("s_waitcnt lgkmcnt(0)")
    A("v_mul_f32 v16, v16, v24")
    for w in range(1, 4): A(f"v_fmac_f32 v16, v{16+w}, v{24+2*w}")
    A("v_and_or_b32 v16, v16, s59, v36"); A("v_mov_b32 v17, s56")
    A(f"buffer_store_dwordx2 v[16:17], v{VKO}, s[48:51], 0 offen sc1")
    A("s_and_b32 s71, s3, 3"); A("s_cmp_lg_u32 s71, 0"); A("s_cbranch_scc1 L_nostat")
    A("v_mul_f32 v22, v25, v24")
    for w in range(1, 4): A(f"v_fmac_f32 v22, v{25+2*w}, v{24+2*w}")
    A("v_or_b32 v20, v20, v36"); A("v_mov_b32 v21, s56"); A("v_and_or_b32 v22, v22, s59, v36"); A("v_mov_b32 v23, s56")
    A("s_lshl_b32 s71, s9, 5"); A("s_lshl_b32 s70, s70, 4"); A("s_add_u32 s71, s71, s70"); A(f"s_add_u32 s71, s71, {SWS}")
    A("v_mov_b32 v24, 0")
    A("s_mov_b64 exec, 1")
    A("buffer_store_dwordx4 v[20:23], v24, s[48:51], s71 offen sc1")
    A("s_mov_b64 exec, -1")
    e.label("L_nostat")
    stamp(4)
    A("s_cmp_lt_u32 s3, 4"); A("s_cbranch_scc1 L_exit")
    def oloads():
        A("buffer_load_dwordx4 v[16:19], v41, s[48:51], 0 offen sc1")
        for p in range(4):
            A(f"buffer_load_dwordx4 v[{20+4*p}:{23+4*p}], v40, s[48:51], s{76+p} offen sc1")
    poll("opoll", oloads, [(16 + 2 * i, 17 + 2 * i) for i in range(10)], (44, 45, 46, 47), sleep=1)
    stamp(5)
    A("v_and_b32 v16, s59, v16")
    A("v_mov_b32 v44, v16")
    xreduce("v_max_f32", 44, 0, 0, (1, 2))
    A("v_sub_f32 v16, v16, v44"); A("v_exp_f32 v16, v16")
    A("v_mul_f32 v18, v18, v16")
    xreduce("v_add_f32", 18, 0, 0, (1, 2))
    A("v_rcp_f32 v18, v18"); A("v_mul_f32 v16, v16, v18")
    A("v_mul_f32_dpp v44, v16, v20 quad_perm:[0,0,0,0] row_mask:0xf bank_mask:0xf")
    A("v_mul_f32_dpp v45, v16, v22 quad_perm:[0,0,0,0] row_mask:0xf bank_mask:0xf")
    for p in range(1, 4):
        A(f"v_fmac_f32_dpp v44, v16, v{20+4*p} quad_perm:[{p},{p},{p},{p}] row_mask:0xf bank_mask:0xf")
        A(f"v_fmac_f32_dpp v45, v16, v{22+4*p} quad_perm:[{p},{p},{p},{p}] row_mask:0xf bank_mask:0xf")
    A("v_cvt_pk_bf16_f32 v44, v44, v45")
    AT = lambda tt: 48 + 4 * tt
    YD = lambda cbk: 64 + 4 * cbk
    for tt in range(4):
        for jp in range(4):
            A(f"v_mov_b32_dpp v{AT(tt)+jp}, v44 row_newbcast:{tt*4+jp} row_mask:0xf bank_mask:0xf")
    for tt in range(4):
        for cbk in range(7):
            C = "0" if tt == 0 else f"v[{YD(cbk)}:{YD(cbk)+3}]"
            A(f"v_mfma_f32_16x16x32_bf16 v[{YD(cbk)}:{YD(cbk)+3}], v[{AT(tt)}:{AT(tt)+3}], v[{WF(tt,cbk)}:{WF(tt,cbk)+3}], {C}")
    A(f"v_cndmask_b32 v16, v{YD(0)}, v{YD(1)}, s[60:61]"); A(f"v_cndmask_b32 v16, v16, v{YD(2)}, s[62:63]"); A(f"v_cndmask_b32 v16, v16, v{YD(3)}, s[64:65]")
    A("v_and_or_b32 v16, v16, s59, v36"); A("v_mov_b32 v17, s56")
    A("buffer_store_dwordx2 v[16:17], v42, s[48:51], 0 offen sc1")
    A(f"v_cndmask_b32 v18, v{YD(4)}, v{YD(5)}, s[60:61]"); A(f"v_cndmask_b32 v18, v18, v{YD(6)}, s[62:63]")
    A("v_and_or_b32 v18, v18, s59, v36"); A("v_mov_b32 v19, s56")
    A("s_mov_b32 s70, -1"); A("s_mov_b32 s71, 0xffff"); A("s_mov_b64 exec, s[70:71]")
    A("buffer_store_dwordx2 v[18:19], v43, s[48:51], 0 offen sc1")
    A("s_mov_b64 exec, -1")
    stamp(6)
    A("s_cmp_lg_u32 s3, 7"); A("s_cbranch_scc1 L_exit")
    A("s_cmp_eq_u32 s4, 7"); A("s_cbranch_scc1 L_fin")
    A("s_lshl_b32 s10, s84, 12"); A(f"s_add_u32 s10, s10, {YWS}")
    srd(44, 32, 33, 7168)
    def yloads():
        for i in range(4):
            A(f"buffer_load_dwordx4 v[{16+4*i}:{19+4*i}], v7, s[48:51], s10 offen offset:{i*1024} sc1")
    poll("ypoll", yloads, [(16 + 2 * i, 17 + 2 * i) for i in range(8)], (44, 45, 46, 47), sleep=1)
    A("v_add_f32 v16, v16, v20"); A("v_add_f32 v24, v24, v28"); A("v_add_f32 v18, v18, v22"); A("v_add_f32 v26, v26, v30")
    A("v_add_f32 v16, v16, v24"); A("v_add_f32 v18, v18, v26")
    xreduce("v_add_f32", 16, 8, 9, (8, 16, 32)); xreduce("v_add_f32", 18, 10, 11, (8, 16, 32))
    bf16r("v16", "v16"); bf16r("v18", "v18")
    A("v_mul_f32 v16, v16, v14"); A("v_mul_f32 v18, v18, v15")
    bf16r("v16", "v16"); bf16r("v18", "v18")
    A("v_lshlrev_b32 v8, 16, v13"); A("v_and_b32 v9, 0xffff0000, v13")
    A("v_add_f32 v16, v16, v8"); A("v_add_f32 v18, v18, v9")
    A("v_cvt_pk_bf16_f32 v16, v16, v18")
    A("s_mov_b64 exec, 0xff")
    A("buffer_store_dword v16, v12, s[44:47], 0 offen")
    A("s_mov_b64 exec, -1")
    A("s_cmp_lg_u32 s2, 0"); A("s_cbranch_scc1 L_fin")
    A("v_mov_b32 v16, s56"); A("v_mov_b32 v17, s58"); A("v_mov_b32 v18, 0")
    A("s_mov_b64 exec, 1")
    A("buffer_store_dwordx2 v[16:17], v18, s[48:51], 0 offen")
    A("s_mov_b64 exec, -1")
    e.label("L_fin")
    if stamps: A("s_waitcnt vmcnt(0)")
    stamp(7)
    e.label("L_exit")
    if stamps:
        A("s_waitcnt vmcnt(0)")
        A("s_mov_b64 exec, 1")
        A("s_lshl_b32 s14, s2, 3"); A("s_add_u32 s14, s14, s3"); A("s_lshl_b32 s14, s14, 7"); A("s_add_u32 s14, s14, 0x10100000"); A("v_mov_b32 v1, s14")
        for q in range(4):
            for i in range(4): A(f"v_mov_b32 v{8+i}, s{86+4*q+i}")
            A(f"global_store_dwordx4 v1, v[8:11], s[36:37] offset:{q*16}")
        A("s_cmp_lg_u32 s3, 7"); A("s_cbranch_scc1 L_end")
        A("v_mov_b32 v8, s86"); A("v_mov_b32 v9, s87"); A("v_mov_b32 v10, s100"); A("v_mov_b32 v11, s101")
        A("s_lshl_b32 s14, s2, 4"); A("s_add_u32 s14, s14, 0x10000000"); A("v_mov_b32 v1, s14")
        A("global_store_dwordx4 v1, v[8:11], s[36:37]")
    e.label("L_end")
    A("s_endpgm")
    e.raw('.section .rodata,"a"'); e.raw(".p2align 6"); e.raw(f".amdhsa_kernel {KN}")
    e.raw("  .amdhsa_next_free_vgpr 256"); e.raw("  .amdhsa_next_free_sgpr 102"); e.raw("  .amdhsa_accum_offset 256")
    e.raw("  .amdhsa_group_segment_fixed_size 0"); e.raw("  .amdhsa_kernarg_size 88"); e.raw("  .amdhsa_user_sgpr_count 2")
    e.raw("  .amdhsa_user_sgpr_kernarg_segment_ptr 1"); e.raw("  .amdhsa_system_sgpr_workgroup_id_x 1"); e.raw(".end_amdhsa_kernel")
    assert e.maxv <= 256 and e.maxs <= 102, (e.maxv, e.maxs)
    return e.text()

if __name__ == "__main__":
    out = sys.argv[1]
    kw = eval("dict(" + (sys.argv[2] if len(sys.argv) > 2 else "") + ")")
    open(out, "w").write(gen(**kw))
```

```python
import sys, math, struct
from emit import Emit
KN = "recurrent_scan__gqa_block_cached__dense_activation_relu__decode_kernel"
QWS = 0x1000
HWS = 0x50000
FWS = 0x70000
OWS = 0x100000
YWS = 0x200000
MB = 0x400000
LS = 4352
QM = MB; HM = MB + 64 * LS; FM = HM + 8 * LS; SM = FM + 56 * LS; OM = SM + 64 * LS; YM = OM + 32 * LS
WS_SIZE = 0x600000
assert YM + 32 * LS <= WS_SIZE
SPIN_MAX = 1 << 17
def f32(x): return "0x%08x" % struct.unpack("<I", struct.pack("<f", x))[0]

def lds_map(NL):
    d = {}
    d['KOVS'] = NL * 1024
    d['T1'] = 4 * NL * 1024
    d['WO'] = d['T1'] + 28672
    d['Q'] = d['WO'] + 16384
    d['S'] = d['Q'] + 1024
    d['F'] = d['S'] + 64
    d['FLAG'] = d['F'] + 32
    d['SIZE'] = d['FLAG'] + 64
    return d
LDS_SIZE = lds_map(28)['SIZE']

def gen(B=50, NL=28, W=8, LMIN=4, stamps=False, wflag="nt", kvflag="nt", catch=2, hprio=3, qsleep=4, hsleep=32, osleep=3,
        ohg=56, xflag="nt", gflag="sc1", iso=0):
    M = lds_map(NL)
    L_T1, L_WO, L_Q, L_S, L_F, L_FLAG, KOVS = M['T1'], M['WO'], M['Q'], M['S'], M['F'], M['FLAG'], M['KOVS']
    L_A = L_T1
    assert M['SIZE'] <= 163840
    e = Emit(); A = e
    e.raw(f"; @launch grid=(256,1,1) block=(512,1,1) lds={M['SIZE']}")
    e.raw('.amdgcn_target "amdgcn-amd-amdhsa--gfx950"')
    e.raw(".text"); e.raw(f".globl {KN}"); e.raw(".p2align 8"); e.raw(f".type {KN},@function"); e.raw(f"{KN}:")
    uid = [0]
    def L(name):
        uid[0] += 1
        return f"L_{name}_{uid[0]}"
    def stamp(i):
        if not stamps: return
        A(f"s_memrealtime s[{86+2*i}:{87+2*i}]"); A("s_waitcnt lgkmcnt(0)")
    def srd(d, lo, hi, size, add=None):
        if add is None:
            A(f"s_mov_b32 s{d}, s{lo}"); A(f"s_and_b32 s{d+1}, s{hi}, 0xffff")
        else:
            A(f"s_add_u32 s{d}, s{lo}, {add}"); A(f"s_addc_u32 s{d+1}, s{hi}, 0"); A(f"s_and_b32 s{d+1}, s{d+1}, 0xffff")
        A(f"s_mov_b32 s{d+2}, {size}"); A(f"s_mov_b32 s{d+3}, 0x20000")
    def tags():
        A("s_add_u32 s56, s38, 1"); A("s_add_u32 s58, s39, 1"); A("s_and_b32 s57, s58, 0xff"); A("s_mov_b32 s59, 0xffffff00")
    def bf16r(d, s):
        A(f"v_cvt_pk_bf16_f32 {d}, {s}, {s}"); A(f"v_lshlrev_b32 {d}, 16, {d}")
    def setexec(m):
        if m == -1: A("s_mov_b64 exec, -1"); return
        A(f"s_mov_b32 s70, {m & 0xffffffff}"); A(f"s_mov_b32 s71, {m >> 32}"); A("s_mov_b64 exec, s[70:71]")
    def check40(grans, acc_a, acc_b, tmp1, tmp2):
        first = True
        for i in range(0, len(grans), 2):
            pair = grans[i:i+2]
            (a0, a1) = pair[0]; (b0, b1) = pair[1] if len(pair) > 1 else pair[0]
            A(f"v_xor_b32 v{tmp1}, s56, v{a1}"); A(f"v_xor_b32 v{tmp2}, s56, v{b1}")
            if first: A(f"v_or_b32 v{acc_a}, v{tmp1}, v{tmp2}")
            else: A(f"v_or3_b32 v{acc_a}, v{acc_a}, v{tmp1}, v{tmp2}")
            A(f"v_xor_b32 v{tmp1}, s57, v{a0}"); A(f"v_xor_b32 v{tmp2}, s57, v{b0}")
            if first: A(f"v_or_b32 v{acc_b}, v{tmp1}, v{tmp2}")
            else: A(f"v_or3_b32 v{acc_b}, v{acc_b}, v{tmp1}, v{tmp2}")
            first = False
        A(f"v_and_b32 v{acc_b}, 0xff, v{acc_b}"); A(f"v_or_b32 v{acc_a}, v{acc_a}, v{acc_b}")
        A(f"v_cmp_ne_u32 vcc, 0, v{acc_a}")
    def check32(tagregs, mn, mx):
        t = tagregs
        A(f"v_min3_u32 v{mn}, v{t[0]}, v{t[1]}, v{t[2]}"); A(f"v_max3_u32 v{mx}, v{t[0]}, v{t[1]}, v{t[2]}")
        i = 3
        while i < len(t):
            a = t[i]; b = t[i+1] if i + 1 < len(t) else t[i]
            A(f"v_min3_u32 v{mn}, v{mn}, v{a}, v{b}"); A(f"v_max3_u32 v{mx}, v{mx}, v{a}, v{b}")
            i += 2
        A(f"v_xor_b32 v{mn}, s56, v{mn}"); A(f"v_xor_b32 v{mx}, s56, v{mx}"); A(f"v_or_b32 v{mn}, v{mn}, v{mx}")
        A(f"v_cmp_ne_u32 vcc, 0, v{mn}")
    def poll(name, loads, chk, sleep=2):
        lp = L(name); done = L(name + "_ok")
        A("s_mov_b32 s80, 0")
        e.label(lp)
        loads()
        A("s_waitcnt vmcnt(0)")
        chk()
        A(f"s_cbranch_vccz {done}")
        A("s_add_u32 s80, s80, 1"); A(f"s_cmp_ge_u32 s80, {SPIN_MAX}"); A(f"s_cbranch_scc1 {done}")
        if sleep: A(f"s_sleep {sleep}")
        A(f"s_branch {lp}")
        e.label(done)
    def hint_poll(name, soff, n, vt1, vt2, sleep):
        A(f"v_min_u32 v{vt2}, {n-1}, v0"); A(f"v_lshlrev_b32 v{vt2}, 2, v{vt2}")
        poll(name, lambda: A(f"buffer_load_dword v{vt1}, v{vt2}, s[48:51], {soff} offen sc1"),
             lambda: A(f"v_cmp_ne_u32 vcc, s56, v{vt1}"), sleep)
    def flag_poll(name, soff, n, vt, va, sleep):
        A(f"v_min_u32 v{va}, {n-1}, v0"); A(f"v_lshlrev_b32 v{va}, 3, v{va}")
        def chk():
            A(f"v_xor_b32 v{vt}, s56, v{vt}"); A(f"v_xor_b32 v{vt+1}, s58, v{vt+1}"); A(f"v_or_b32 v{vt}, v{vt}, v{vt+1}")
            A(f"v_cmp_ne_u32 vcc, 0, v{vt}")
        poll(name, lambda: A(f"buffer_load_dwordx2 v[{vt}:{vt+1}], v{va}, s[48:51], {soff} offen sc1"), chk, sleep)
    def lds_wait(name, vaddr, off, vt, sleep, tgt=None):
        lp = L(name); done = tgt or L(name + "_ok")
        e.label(lp)
        A(f"ds_read_b32 v{vt}, v{vaddr} offset:{off}"); A("s_waitcnt lgkmcnt(0)"); A(f"v_readfirstlane_b32 s13, v{vt}")
        A("s_cmp_lg_u32 s13, 0"); A(f"s_cbranch_scc1 {done}"); A(f"s_sleep {sleep}"); A(f"s_branch {lp}")
        if tgt is None: e.label(done)
    DPP = "row_mask:0xf bank_mask:0xf"
    def xreduce(op, v, t1, t2, steps):
        for st in steps:
            if st == 1: A(f"{op}_dpp v{v}, v{v}, v{v} quad_perm:[1,0,3,2] {DPP}")
            elif st == 2: A(f"{op}_dpp v{v}, v{v}, v{v} quad_perm:[2,3,0,1] {DPP}")
            elif st == 4: A(f"{op}_dpp v{v}, v{v}, v{v} row_half_mirror {DPP}")
            elif st == 'r4': A(f"{op}_dpp v{v}, v{v}, v{v} row_ror:4 {DPP}")
            elif st == 8: A(f"{op}_dpp v{v}, v{v}, v{v} row_ror:8 {DPP}")
            elif st in (16, 32):
                A(f"v_mov_b32 v{t1}, v{v}"); A(f"v_mov_b32 v{t2}, v{v}")
                A(f"v_permlane{st}_swap_b32 v{t1}, v{t2}")
                A(f"{op} v{v}, v{t1}, v{t2}")

    A("s_cmp_ge_u32 s2, 256"); A("s_cbranch_scc1 L_end")
    A("s_load_dwordx16 s[16:31], s[0:1], 0")
    A("s_load_dwordx4 s[32:35], s[0:1], 64")
    A("s_load_dwordx2 s[36:37], s[0:1], 80")
    if stamps:
        A("s_memrealtime s[86:87]")
        for i in range(88, 102): A(f"s_mov_b32 s{i}, 0")
    A("v_lshrrev_b32 v1, 6, v0"); A("v_readfirstlane_b32 s3, v1"); A("v_and_b32 v0, 63, v0")
    A("s_and_b32 s4, s2, 7"); A("s_lshr_b32 s5, s2, 3"); A("s_lshr_b32 s6, s5, 2"); A("s_and_b32 s7, s5, 3")
    A("s_lshl_b32 s8, s6, 3"); A("s_add_u32 s8, s8, s4")
    A("s_lshl_b32 s9, s8, 2"); A("s_add_u32 s9, s9, s7")
    A("s_cmp_ge_u32 s3, 4"); A("s_cbranch_scc1 L_helper")

    def combine_setup(vpos, vk, vf):
        A("s_lshr_b32 s70, s3, 2"); A("s_bfe_u32 s71, s3, 0x10001"); A("s_and_b32 s72, s3, 1")
        A("s_lshl_b32 s73, s71, 10")
        A("s_lshl_b32 s74, s72, 9"); A("s_add_u32 s73, s73, s74")
        A("s_lshl_b32 s74, s70, 7"); A("s_add_u32 s73, s73, s74")
        A(f"v_lshrrev_b32 v{vpos}, 5, v0"); A(f"v_lshlrev_b32 v{vpos}, 8, v{vpos}")
        A(f"v_and_b32 v{vk}, 7, v0"); A(f"v_lshl_add_u32 v{vpos}, v{vk}, 4, v{vpos}")
        A(f"v_bfe_u32 v{vk}, v0, 3, 2"); A(f"v_lshl_add_u32 v{vpos}, v{vk}, 2, v{vpos}")
        A(f"v_add_u32 v{vpos}, s73, v{vpos}")
        A("s_lshl_b32 s73, s9, 11"); A("s_lshl_b32 s74, s3, 8"); A("s_add_u32 s73, s73, s74"); A(f"s_add_u32 s73, s73, {OWS}")
        A(f"v_lshlrev_b32 v{vk}, 2, v0"); A(f"v_add_u32 v{vk}, s73, v{vk}")
        A("s_lshl_b32 s74, s70, 4"); A(f"s_add_u32 s74, s74, {L_F}"); A(f"v_mov_b32 v{vf}, s74")
    VPOS, VKO, VF = 38, 39, 37

    TMPK = 40; BUF0 = 56
    assert BUF0 + 4 * B <= 256
    def is_lds(n): return B <= n < B + NL
    def ridx(n): return n if n < B else n - NL
    def buf(n): r = BUF0 + 4 * (ridx(n) % B); return f"v[{r}:{r+3}]"
    A("v_lshrrev_b32 v3, 4, v0")
    A("v_bfe_u32 v4, v0, 2, 2"); A("v_and_b32 v5, 3, v0")
    A("v_lshlrev_b32 v1, 9, v4"); A("v_lshl_add_u32 v1, v3, 6, v1"); A("v_lshl_add_u32 v1, v5, 4, v1")
    A("v_and_b32 v5, 15, v0"); A("v_lshlrev_b32 v2, 9, v3"); A("v_lshl_add_u32 v2, v5, 4, v2")
    A("s_lshl_b32 s10, s9, 19"); A("s_lshl_b32 s11, s3, 11"); A("s_mov_b32 s12, s11")
    A(f"s_mul_i32 s14, s3, {KOVS}")
    A("s_waitcnt lgkmcnt(0)")
    srd(40, 18, 19, 0x80000, "s10"); srd(44, 20, 21, 0x80000, "s10")
    A("s_load_dwordx2 s[38:39], s[36:37], 0")
    vmops = []
    st = dict(ni=0, landed=0)
    def wait_landed(n):
        if st['landed'] >= n: return
        after = len(vmops) - 1 - vmops.index(n - 1)
        A(f"s_waitcnt vmcnt({after})"); st['landed'] = n
    def issue():
        n = st['ni']
        if n >= W: wait_landed(n - W + 1)
        half = n & 1
        if is_lds(n):
            A(f"s_add_u32 m0, s14, {(n - B) * 1024 - half * 256}")
            A(f"buffer_load_dwordx4 v1, s[40:43], s11 offen offset:{half*256} {kvflag} lds")
            if half: A("s_add_u32 s11, s11, 8192")
        elif n < 128:
            A(f"buffer_load_dwordx4 {buf(n)}, v1, s[40:43], s11 offen offset:{half*256} {kvflag}")
            if half: A("s_add_u32 s11, s11, 8192")
        else:
            A(f"buffer_load_dwordx4 {buf(n)}, v2, s[44:47], s12 offen offset:{half*256} {kvflag}")
            if half: A("s_add_u32 s12, s12, 8192")
        st['ni'] += 1; vmops.append(n)
    for _ in range(W): issue()
    srd(48, 36, 37, WS_SIZE)
    for j in range(8):
        A(f"s_mov_b32 s{60+2*j}, {0x01010101 << j}"); A(f"s_mov_b32 s{61+2*j}, {0x01010101 << j}")
    A("v_and_b32 v32, 1, v0"); A("v_cmp_eq_u32 vcc, 1, v32")
    A("v_mov_b32 v33, 0xffff"); A("v_mov_b32 v34, 0xffff0000"); A("v_cndmask_b32 v33, v33, v34, vcc")
    A("v_bfe_u32 v32, v0, 1, 2")
    for r in range(4):
        A(f"v_cmp_eq_u32 vcc, {r}, v32"); A(f"v_cndmask_b32 v{4+r}, 0, v33, vcc")
    A("v_bfe_u32 v32, v0, 3, 1"); A("v_lshlrev_b32 v36, 9, v32"); A("v_lshl_add_u32 v36, v3, 6, v36")
    A("v_and_b32 v32, 3, v0"); A("v_lshl_add_u32 v36, v32, 4, v36"); A(f"v_add_u32 v36, {L_Q}, v36")
    A(f"v_mov_b32 v37, {L_FLAG}")
    A("v_lshlrev_b32 v3, 4, v0"); A("v_add_u32 v3, s14, v3")
    A("s_waitcnt lgkmcnt(0)")
    tags()
    A("s_barrier")
    while st['ni'] < B + NL: issue()
    stamp(5)
    if iso != 1: lds_wait("qwait", 37, 0, 32, 1)
    A("ds_read_b128 v[8:11], v36"); A("ds_read_b128 v[12:15], v36 offset:256")
    stamp(1)
    A("s_waitcnt lgkmcnt(0)")
    P = lambda r: 24 + r
    def kred(c):
        D = 16 + 4 * (c & 1)
        A(f"v_mov_b32_dpp v32, v{D} quad_perm:[0,0,0,0] {DPP}")
        for i in (1, 2, 3):
            A(f"v_add_f32_dpp v32, v{D+i}, v32 quad_perm:[{i},{i},{i},{i}] {DPP}")
        j = c & 7
        if j == 0: A(f"v_mov_b32 v{P(c>>3)}, v32")
        else: A(f"v_cndmask_b32 v{P(c>>3)}, v{P(c>>3)}, v32, s[{60+2*j}:{61+2*j}]")
    def lds_fetch(c):
        wait_landed(2 * c + 2)
        t = TMPK + 8 * (c & 1)
        A(f"ds_read_b128 v[{t}:{t+3}], v3 offset:{(2*c-B)*1024}")
        A(f"ds_read_b128 v[{t+4}:{t+7}], v3 offset:{(2*c+1-B)*1024}")
    def kcons(c):
        D = 16 + 4 * (c & 1)
        nxt = is_lds(2 * (c + 1))
        if is_lds(2 * c):
            t = TMPK + 8 * (c & 1)
            if nxt: lds_fetch(c + 1); A("s_waitcnt lgkmcnt(2)")
            else: A("s_waitcnt lgkmcnt(0)")
            a0, a1 = f"v[{t}:{t+3}]", f"v[{t+4}:{t+7}]"
        else:
            wait_landed(2 * c + 2)
            if nxt: lds_fetch(c + 1)
            a0, a1 = buf(2 * c), buf(2 * c + 1)
        A(f"v_mfma_f32_16x16x32_bf16 v[{D}:{D+3}], {a0}, v[8:11], 0")
        A(f"v_mfma_f32_16x16x32_bf16 v[{D}:{D+3}], {a1}, v[12:15], v[{D}:{D+3}]")
        if c > 0: kred(c - 1)
    def vprep(c):
        j = c & 7; r = c >> 3; pb = 32 + (c & 1); Bs = 8 + 4 * (c & 1)
        A(f"v_mov_b32_dpp v{pb}, v{P(r)} row_newbcast:{j} row_mask:0xf bank_mask:0x3")
        A(f"v_mov_b32_dpp v{pb}, v{P(r)} row_newbcast:{8+j} row_mask:0xf bank_mask:0xc")
        for i in range(4): A(f"v_and_b32 v{Bs+i}, v{pb}, v{4+i}")
    def vcons(c):
        Bs = 8 + 4 * (c & 1)
        wait_landed(128 + 2 * c + 2)
        for dh in range(2):
            O = 16 + 4 * dh
            C = "0" if c == 0 else f"v[{O}:{O+3}]"
            A(f"v_mfma_f32_16x16x32_bf16 v[{O}:{O+3}], {buf(128+2*c+dh)}, v[{Bs}:{Bs+3}], {C}")
        if c + 1 < 64: vprep(c + 1)
        if c == ohg:
            A(f"s_mul_i32 s13, s4, {4*LS}"); A("s_lshl_b32 s15, s5, 2"); A("s_add_u32 s13, s13, s15"); A(f"s_add_u32 s13, s13, {OM}")
            A(f"v_mul_u32_u24 v1, {LS}, v0")
            A("s_lshl_b32 s70, 1, s3"); A("s_mov_b32 s71, 0")
            A("v_mov_b32 v36, s56")
            A("s_mov_b64 exec, s[70:71]")
            A("buffer_store_dword v36, v1, s[48:51], s13 offen sc1")
            A("s_mov_b64 exec, -1")
            vmops.append('x')
    def softmax():
        kred(63)
        A(f"v_max3_f32 v34, v{P(0)}, v{P(1)}, v{P(2)}"); A(f"v_max3_f32 v34, v34, v{P(3)}, v{P(4)}")
        A(f"v_max3_f32 v34, v34, v{P(5)}, v{P(6)}"); A(f"v_max_f32 v34, v34, v{P(7)}")
        xreduce("v_max_f32", 34, 32, 33, (1, 2, 4, 16, 32))
        A(f"s_mov_b32 s13, {f32(math.log2(math.e) / 16.0)}")
        A("v_mul_f32 v34, s13, v34")
        for r in range(8): A(f"v_fma_f32 v{P(r)}, v{P(r)}, s13, -v34")
        for r in range(8): A(f"v_exp_f32 v{P(r)}, v{P(r)}")
        A(f"v_add_f32 v35, v{P(0)}, v{P(1)}")
        for r in range(2, 8): A(f"v_add_f32 v35, v35, v{P(r)}")
        for r in range(8): A(f"v_cvt_pk_bf16_f32 v{P(r)}, v{P(r)}, v{P(r)}")
        xreduce("v_add_f32", 35, 32, 33, (1, 2, 4, 16, 32))
        A("v_bfe_u32 v36, v0, 3, 1"); A("v_lshlrev_b32 v36, 5, v36"); A("s_lshl_b32 s13, s3, 3"); A(f"s_add_u32 s13, s13, {L_S}"); A("v_add_u32 v36, s13, v36")
        A("ds_write_b64 v36, v[34:35]")
        A("s_lshl_b32 s13, s3, 2"); A("v_add_u32 v37, s13, v37"); A("v_mov_b32 v36, 1")
        A("s_waitcnt lgkmcnt(0)")
        A("ds_write_b32 v37, v36 offset:8")
        combine_setup(VPOS, VKO, VF)
        stamp(3)
        vprep(0)
    nc = 0
    def consume():
        nonlocal nc
        if nc < 64: kcons(nc)
        else:
            if nc == 64: softmax()
            vcons(nc - 64)
        nc += 1
    def can_issue():
        n = st['ni']
        if n >= 256: return False
        ri = ridx(n) - B
        prev = ri if ri < B else ri + NL
        return prev // 2 < nc
    while nc < 128:
        lag = st['ni'] // 2 - nc
        consume()
        if lag > LMIN:
            for _ in range(catch - 1):
                if nc < 128 and st['ni'] // 2 - nc > LMIN: consume()
        for _ in range(2):
            if can_issue(): issue()
    A("ds_write_b128 v3, v[16:19]"); A("ds_write_b128 v3, v[20:23] offset:1024")
    stamp(2)
    if iso:
        stamp(7)
        A("s_cmp_lg_u32 s3, 0"); A("s_cbranch_scc1 L_exit")
        A("v_mov_b32 v8, s86"); A("v_mov_b32 v9, s87"); A("v_mov_b32 v10, s100"); A("v_mov_b32 v11, s101")
        A("s_lshl_b32 s14, s2, 4"); A("s_add_u32 s14, s14, 0x10000000"); A("v_mov_b32 v1, s14")
        A("s_mov_b64 exec, 1"); A("global_store_dwordx4 v1, v[8:11], s[36:37]"); A("s_mov_b64 exec, -1")
        A("s_branch L_exit")
    A("s_branch L_bar2")

    e.label("L_helper")
    if hprio: A(f"s_setprio {hprio}")
    if iso == 1: A("s_barrier"); A("s_branch L_end")
    A("s_sub_u32 s15, s3, 4")
    A("v_lshrrev_b32 v3, 4, v0"); A("v_bfe_u32 v4, v0, 2, 2"); A("v_and_b32 v5, 3, v0"); A("v_and_b32 v6, 15, v0")
    A(f"v_mov_b32 v2, {L_FLAG}"); A("v_lshlrev_b32 v7, 4, v0"); A("v_mov_b32 v12, 0")
    A("s_waitcnt lgkmcnt(0)")
    A("s_load_dwordx2 s[38:39], s[36:37], 0")
    srd(48, 36, 37, WS_SIZE)
    A("s_cmp_lg_u32 s3, 4"); A("s_cbranch_scc1 L_h123")
    WFR = lambda ks, cbk: 128 + 4 * (cbk * 7 + ks)
    XF = lambda ks: 64 + 4 * ks
    DD = lambda cbk: 40 + 4 * cbk
    def tile_dma():
        A("v_lshrrev_b32 v8, 3, v0"); A("v_mul_lo_u32 v8, v8, s10"); A("v_and_b32 v9, 7, v0"); A("v_lshl_add_u32 v8, v9, 4, v8")
        A("s_lshl_b32 s72, s10, 3")
        for i in range(28):
            A(f"s_mov_b32 m0, {L_T1 + i*1024}")
            A(f"buffer_load_dwordx4 v8, s[40:43], s11 offen {wflag} lds")
            A("s_add_u32 s11, s11, s72")
        A("v_lshl_add_u32 v9, v3, 3, v4"); A("v_lshlrev_b32 v9, 7, v9"); A("v_lshl_add_u32 v9, v5, 3, v9"); A(f"v_add_u32 v9, {L_T1}, v9")
        A("v_and_b32 v10, 7, v0"); A("v_mul_lo_u32 v10, v10, s14"); A("v_bfe_u32 v11, v0, 3, 1"); A("v_lshl_add_u32 v10, v11, 6, v10")
        A("v_lshl_add_u32 v10, v3, 4, v10"); A("v_add_u32 v10, s13, v10")
    def tile_mfma(extra):
        seq = [(ks, cbk) for cbk in range(4) for ks in range(7)]
        def rd(i):
            ks, cbk = seq[i]; w = WFR(ks, cbk)
            A(f"ds_read_b64_tr_b16 v[{w}:{w+1}], v9 offset:{ks*4096+cbk*32}")
            A(f"ds_read_b64_tr_b16 v[{w+2}:{w+3}], v9 offset:{ks*4096+cbk*32+512}")
        for i in range(6): rd(i)
        per = (len(extra) + 27) // 28
        for i in range(28):
            if i + 6 < 28: rd(i + 6); A("s_waitcnt lgkmcnt(12)")
            else: A(f"s_waitcnt lgkmcnt({2*(27-i)})")
            ks, cbk = seq[i]; w = WFR(ks, cbk); D = DD(cbk)
            C = "0" if ks == 0 else f"v[{D}:{D+3}]"
            A(f"v_mfma_f32_16x16x32_bf16 v[{D}:{D+3}], v[{w}:{w+3}], v[{XF(ks)}:{XF(ks)+3}], {C}")
            for x in extra[i * per:(i + 1) * per]: A(x)
    def publish():
        for cp in range(2):
            a, b_ = DD(2 * cp), DD(2 * cp + 1)
            for i in range(4): A(f"v_mov_b32_dpp v{a+i}, v{b_+i} row_ror:8 row_mask:0xf bank_mask:0xc")
            A(f"buffer_store_dwordx4 v[{a}:{a+3}], v10, s[48:51], 0 offen offset:{cp*128} sc1")
        A("v_mov_b32 v16, s56"); A("v_mov_b32 v17, s58")
        A("s_waitcnt vmcnt(0)")
        A("s_mov_b32 s67, 0"); A("s_mov_b64 exec, s[66:67]")
        A("buffer_store_dwordx2 v[16:17], v13, s[48:51], s75 offen sc1")
        A("s_mov_b64 exec, -1")
    A("s_cmp_ge_u32 s5, 23"); A("s_cbranch_scc1 L_h0late")
    A("s_cmp_ge_u32 s5, 16"); A("s_cbranch_scc1 L_f1")
    A("s_lshr_b32 s82, s5, 1"); A("s_and_b32 s83, s5, 1")
    srd(40, 22, 23, 448 * 8192)
    A("s_mov_b32 s10, 8192")
    A(f"s_mul_i32 s11, s83, {224*8192}"); A("s_lshl_b32 s12, s4, 10"); A("s_add_u32 s11, s11, s12"); A("s_lshl_b32 s12, s82, 7"); A("s_add_u32 s11, s11, s12")
    A("s_lshl_b32 s13, s83, 17"); A("s_lshl_b32 s12, s4, 11"); A("s_add_u32 s13, s13, s12"); A("s_lshl_b32 s12, s82, 8"); A("s_add_u32 s13, s13, s12"); A(f"s_add_u32 s13, s13, {QWS}")
    A("s_mov_b32 s14, 16384")
    A(f"s_mul_i32 s75, s4, {LS}"); A("s_lshl_b32 s12, s5, 3"); A("s_add_u32 s75, s75, s12"); A(f"s_add_u32 s75, s75, {QM}")
    A(f"v_mul_u32_u24 v13, {8*LS}, v0"); A("s_mov_b32 s66, 0xff")
    A("s_branch L_gemv")
    e.label("L_f1")
    A("s_mul_i32 s82, s4, 7"); A("s_add_u32 s82, s82, s5"); A("s_sub_u32 s82, s82, 16"); A("s_and_b32 s83, s82, 1"); A("s_lshr_b32 s82, s82, 1")
    srd(40, 28, 29, 448 * 3584)
    A("s_mov_b32 s10, 3584")
    A(f"s_mul_i32 s11, s83, {224*3584}"); A("s_lshl_b32 s12, s82, 7"); A("s_add_u32 s11, s11, s12")
    A(f"s_mul_i32 s13, s83, {8*7168}"); A("s_lshl_b32 s12, s82, 8"); A("s_add_u32 s13, s13, s12"); A(f"s_add_u32 s13, s13, {HWS}")
    A("s_mov_b32 s14, 7168")
    A("s_lshl_b32 s12, s82, 1"); A("v_add_u32 v13, s12, v0"); A("v_mul_u32_u24 v13, 9363, v13"); A("v_lshrrev_b32 v13, 16, v13")
    A("v_mul_u32_u24 v14, 7, v13"); A("v_lshrrev_b32 v14, 1, v14"); A("v_sub_u32 v14, s82, v14"); A("v_lshlrev_b32 v14, 4, v14")
    A(f"v_mul_u32_u24 v13, {LS}, v13"); A("v_add_u32 v13, v13, v14")
    A("s_lshl_b32 s75, s83, 3"); A(f"s_add_u32 s75, s75, {HM}"); A("s_mov_b32 s66, 3")
    e.label("L_gemv")
    tile_dma()
    srd(44, 16, 17, 7168)
    A("v_and_b32 v14, 7, v0"); A("v_mul_u32_u24 v14, 896, v14"); A("v_lshl_add_u32 v14, v3, 4, v14")
    A("s_mul_i32 s72, s83, 448"); A("s_sub_u32 s73, 448, s72")
    setexec(0x00ff00ff00ff00ff)
    for ks in range(14):
        A(f"buffer_load_dwordx4 v[{XF(ks)}:{XF(ks)+3}], v14, s[44:47], s{72 + ks // 7} offen offset:{(ks % 7)*64} {xflag}")
    A("s_not_b64 exec, s[70:71]")
    for ks in range(14):
        for i in range(4): A(f"v_mov_b32 v{XF(ks)+i}, 0x3f803f80")
    A("s_mov_b64 exec, -1")
    A("v_and_b32 v22, 7, v0"); A("v_lshlrev_b32 v20, 2, v22"); A("v_lshrrev_b32 v21, 2, v22"); A("v_lshl_add_u32 v21, v21, 6, v20"); A("v_add_u32 v20, 128, v20")
    for i, m in enumerate((0x22222222, 0x44444444, 0x88888888)):
        A(f"s_mov_b32 s{60+2*i}, {m}"); A(f"s_mov_b32 s{61+2*i}, {m}")
    A("s_waitcnt lgkmcnt(0)"); tags(); A("s_barrier")
    A("s_waitcnt vmcnt(0)")
    stamp(6)
    for ks in range(14):
        C = "0" if ks == 0 else "v[16:19]"
        A(f"v_mfma_f32_16x16x32_bf16 v[16:19], v[{XF(ks)}:{XF(ks)+3}], v[{XF(ks)}:{XF(ks)+3}], {C}")
    A("v_cndmask_b32 v22, v16, v17, s[60:61]"); A("v_cndmask_b32 v22, v22, v18, s[62:63]"); A("v_cndmask_b32 v22, v22, v19, s[64:65]")
    A("ds_bpermute_b32 v24, v20, v16"); A("ds_bpermute_b32 v25, v21, v22")
    A(f"s_mov_b32 s72, {f32(1.0/448.0)}"); A(f"s_mov_b32 s73, {f32(1e-5)}")
    A("s_waitcnt lgkmcnt(0)")
    def rb(r): return [f"v_cvt_pk_bf16_f32 v{r}, v{r}, v{r}", f"v_lshlrev_b32 v{r}, 16, v{r}"]
    stat = ["v_mul_f32 v24, s72, v24", "v_mul_f32 v25, s72, v25", "v_fma_f32 v25, -v24, v24, v25", "v_max_f32 v25, 0, v25"] + rb(25) + \
           ["v_add_f32 v25, s73, v25"] + rb(25) + ["v_sqrt_f32 v25, v25"] + rb(25) + ["v_rcp_f32 v25, v25"] + rb(24)
    tile_mfma(stat)
    for cbk in range(4):
        for i in range(4):
            r = DD(cbk) + i
            A(f"v_mul_f32_dpp v26, v{r}, v24 row_ror:8 {DPP}")
            A(f"v_sub_f32 v{r}, v{r}, v26"); A(f"v_mul_f32 v{r}, v{r}, v25")
    publish()
    stamp(1)
    A("s_branch L_hpre")
    e.label("L_h0late")
    A("s_waitcnt lgkmcnt(0)"); tags(); A("s_barrier")
    A("s_cmp_ge_u32 s5, 30"); A("s_cbranch_scc1 L_hpre")
    A("s_sub_u32 s82, s5, 23")
    srd(40, 30, 31, 1792 * 896)
    A("s_mov_b32 s10, 896")
    A(f"s_mul_i32 s11, s4, {224*896}"); A("s_lshl_b32 s12, s82, 7"); A("s_add_u32 s11, s11, s12")
    A(f"s_mul_i32 s13, s4, {8*1792}"); A("s_lshl_b32 s12, s82, 8"); A("s_add_u32 s13, s13, s12"); A(f"s_add_u32 s13, s13, {FWS}")
    A("s_mov_b32 s14, 1792")
    A(f"s_mul_i32 s75, s4, {LS}"); A(f"s_add_u32 s75, s75, {HM}")
    flag_poll("hf", "s75", 8, 16, 18, hsleep)
    tile_dma()
    A("v_and_b32 v14, 7, v0"); A("v_mul_u32_u24 v14, 7168, v14"); A("v_lshl_add_u32 v14, v3, 5, v14"); A("v_bfe_u32 v15, v0, 3, 1"); A("v_lshl_add_u32 v14, v15, 4, v14")
    A(f"s_mul_i32 s72, s4, 896"); A(f"s_add_u32 s72, s72, {HWS}"); A(f"s_add_u32 s73, s72, {8*7168}")
    for kh in range(2):
        for k in range(7):
            r = 64 + 4 * (kh * 7 + k)
            A(f"buffer_load_dwordx4 v[{r}:{r+3}], v14, s[48:51], s{72+kh} offen offset:{k*128} {gflag}")
    A(f"s_mul_i32 s75, s82, {8*LS}"); A("s_lshl_b32 s12, s4, 3"); A("s_add_u32 s75, s75, s12"); A(f"s_add_u32 s75, s75, {FM}")
    A(f"v_mul_u32_u24 v13, {LS}, v0"); A("s_mov_b32 s66, 0xff")
    A("s_waitcnt vmcnt(0)")
    for k in range(7):
        a = 64 + 4 * k; b_ = 92 + 4 * k
        for i in range(4): A(f"v_add_f32 v{a+i}, v{a+i}, v{b_+i}")
        for i in range(4): A(f"v_max_f32 v{a+i}, 0, v{a+i}")
        A(f"v_cvt_pk_bf16_f32 v{a}, v{a}, v{a+1}"); A(f"v_cvt_pk_bf16_f32 v{a+1}, v{a+2}, v{a+3}")
        A(f"v_mov_b32_dpp v{a+2}, v{a} row_ror:8 {DPP}"); A(f"v_mov_b32_dpp v{a+3}, v{a+1} row_ror:8 {DPP}")
    tile_mfma([])
    publish()
    stamp(1)
    A("s_branch L_hpre")

    e.label("L_h123")
    A("s_cmp_eq_u32 s3, 6"); A("s_cbranch_scc1 L_h2")
    A("s_waitcnt lgkmcnt(0)"); tags(); A("s_barrier")
    A("s_cmp_eq_u32 s3, 7"); A("s_cbranch_scc1 L_h3")
    lds_wait("h1w", 2, 0, 8, 8)
    srd(40, 24, 25, 4096 * 896)
    A("v_mul_u32_u24 v8, 896, v3"); A("v_lshl_add_u32 v8, v6, 4, v8")
    A("s_lshl_b32 s11, s4, 3"); A("s_add_u32 s11, s11, s6"); A(f"s_mul_i32 s11, s11, {64*896}")
    A("s_mul_i32 s12, s7, 224"); A("s_add_u32 s11, s11, s12")
    setexec(0x3fff3fff3fff3fff)
    for i in range(16):
        A(f"s_mov_b32 m0, {L_WO + i*1024}")
        A(f"buffer_load_dwordx4 v8, s[40:43], s11 offen {wflag} lds")
        A(f"s_add_u32 s11, s11, {4*896}")
    A("s_mov_b64 exec, -1")
    A("s_waitcnt vmcnt(0)")
    stamp(2)
    A("s_branch L_hpre")
    e.label("L_h2")
    A("v_mov_b32 v8, 0"); A("v_mov_b32 v9, 0"); A("v_mov_b32 v10, 0"); A("v_mov_b32 v11, 0")
    A("ds_write_b128 v2, v[8:11]"); A("ds_write_b64 v2, v[8:9] offset:16")
    A("s_lshl_b32 s10, s6, 14"); A("s_lshl_b32 s11, s4, 11"); A("s_add_u32 s10, s10, s11"); A(f"s_add_u32 s10, s10, {QWS}"); A("s_add_u32 s11, s10, 0x20000")
    A("v_lshlrev_b32 v9, 3, v0"); A(f"v_add_u32 v9, {L_Q}, v9")
    A(f"s_mul_i32 s75, s8, {LS}"); A(f"s_add_u32 s75, s75, {QM}")
    A("s_waitcnt lgkmcnt(0)"); tags(); A("s_barrier")
    flag_poll("qf", "s75", 16, 16, 18, qsleep)
    stamp(1)
    for kh in range(2):
        for t in range(2):
            r = 16 + 8 * kh + 4 * t
            A(f"buffer_load_dwordx4 v[{r}:{r+3}], v7, s[48:51], s{10+kh} offen offset:{t*1024} {gflag}")
    A("s_waitcnt vmcnt(0)")
    for i in range(8): A(f"v_add_f32 v{16+i}, v{16+i}, v{24+i}")
    for t in range(2):
        A(f"v_cvt_pk_bf16_f32 v{32+2*t}, v{16+4*t}, v{17+4*t}"); A(f"v_cvt_pk_bf16_f32 v{33+2*t}, v{18+4*t}, v{19+4*t}")
        A(f"ds_write_b64 v9, v[{32+2*t}:{33+2*t}] offset:{t*512}")
    A("s_waitcnt lgkmcnt(0)")
    A("v_mov_b32 v8, 1"); A("ds_write_b32 v2, v8")
    stamp(3)
    if iso: A("s_branch L_end")
    lp = L("kd"); dn = L("kd_ok")
    e.label(lp)
    A("ds_read_b128 v[8:11], v2 offset:8") if False else None
    A("ds_read_b64 v[8:9], v2 offset:8"); A("ds_read_b64 v[10:11], v2 offset:16"); A("s_waitcnt lgkmcnt(0)")
    A("v_and_b32 v8, v8, v9"); A("v_and_b32 v10, v10, v11"); A("v_and_b32 v8, v8, v10"); A("v_readfirstlane_b32 s13, v8")
    A("s_cmp_lg_u32 s13, 0"); A(f"s_cbranch_scc1 {dn}"); A("s_sleep 16"); A(f"s_branch {lp}")
    e.label(dn)
    A("v_and_b32 v8, 7, v0"); A("v_lshlrev_b32 v9, 3, v8"); A(f"v_add_u32 v9, {L_S}, v9")
    A("ds_read_b64 v[16:17], v9"); A("s_waitcnt lgkmcnt(0)")
    A("v_mov_b32 v18, v16"); xreduce("v_max_f32", 18, 0, 0, (1, 2)); A("v_and_b32 v18, s59, v18")
    A("v_sub_f32 v19, v16, v18"); A("v_exp_f32 v19, v19"); A("v_mul_f32 v19, v19, v17"); xreduce("v_add_f32", 19, 0, 0, (1, 2))
    A("v_and_b32 v10, 1, v0"); A("v_cmp_eq_u32 vcc, 1, v10"); A("v_cndmask_b32 v20, v18, v19, vcc")
    A("v_mov_b32 v11, s57"); A("v_and_or_b32 v20, v20, s59, v11"); A("v_mov_b32 v21, s56")
    A("v_bfe_u32 v11, v0, 2, 1"); A("v_lshlrev_b32 v11, 4, v11"); A("v_lshl_add_u32 v11, v10, 3, v11")
    A(f"s_mul_i32 s75, s8, {LS}"); A(f"s_add_u32 s75, s75, {SM}"); A("s_lshl_b32 s72, s7, 5"); A("s_add_u32 s72, s72, s75")
    A("s_mov_b64 exec, 0x33")
    A("buffer_store_dwordx2 v[20:21], v11, s[48:51], s72 offen sc1")
    A("s_mov_b64 exec, -1")
    A("v_lshlrev_b32 v11, 3, v6")
    poll("sx", lambda: A("buffer_load_dwordx2 v[22:23], v11, s[48:51], s75 offen sc1"), lambda: check40([(22, 23)], 24, 25, 26, 27), sleep=16)
    A("v_and_b32 v22, s59, v22")
    A(f"v_mov_b32_dpp v24, v22 quad_perm:[0,0,2,2] {DPP}")
    A("v_mov_b32 v25, v24"); xreduce("v_max_f32", 25, 0, 0, ('r4', 8))
    A("v_sub_f32 v24, v24, v25"); A("v_exp_f32 v24, v24"); A("v_mul_f32 v24, v24, v22")
    xreduce("v_add_f32", 24, 0, 0, ('r4', 8))
    A("v_readlane_b32 s72, v25, 0"); A("v_readlane_b32 s73, v24, 1"); A("v_readlane_b32 s74, v25, 2"); A("v_readlane_b32 s75, v24, 3")
    A("v_bfe_u32 v10, v0, 2, 1"); A("v_cmp_eq_u32 vcc, 1, v10")
    A("v_mov_b32 v24, s72"); A("v_mov_b32 v25, s74"); A("v_cndmask_b32 v24, v24, v25, vcc")
    A("v_mov_b32 v25, s73"); A("v_mov_b32 v26, s75"); A("v_cndmask_b32 v25, v25, v26, vcc")
    A("v_sub_f32 v16, v16, v24"); A("v_exp_f32 v16, v16"); A("v_rcp_f32 v25, v25"); A("v_mul_f32 v16, v16, v25")
    A("v_lshlrev_b32 v9, 2, v8"); A(f"v_add_u32 v9, {L_F}, v9")
    A("ds_write_b32 v9, v16")
    stamp(2)
    A("s_branch L_hpre")
    e.label("L_h3")
    if iso: A("s_branch L_end")
    A("s_mul_i32 s85, s7, 7"); A("s_add_u32 s85, s85, s4")
    A("s_mul_i32 s84, s6, 28"); A("s_add_u32 s84, s84, s85")
    A("s_cmp_eq_u32 s4, 7"); A("s_cbranch_scc1 L_hpre")
    srd(44, 16, 17, 7168)
    A("v_and_b32 v12, 7, v0"); A("v_lshlrev_b32 v12, 2, v12"); A("s_lshl_b32 s11, s84, 5"); A("v_add_u32 v12, s11, v12")
    A("buffer_load_dword v13, v12, s[44:47], 0 offen")
    A("s_lshr_b32 s75, s85, 2"); A("s_lshl_b32 s75, s75, 3"); A("s_add_u32 s75, s75, s6"); A(f"s_mul_i32 s75, s75, {LS}"); A(f"s_add_u32 s75, s75, {FM}")
    A("s_sleep 127")
    flag_poll("ff", "s75", 8, 16, 18, 2 * hsleep)
    A("v_lshrrev_b32 v8, 3, v0"); A("v_mul_u32_u24 v8, 14336, v8"); A("v_and_b32 v9, 7, v0"); A("v_lshl_add_u32 v8, v9, 3, v8")
    A("s_lshl_b32 s10, s84, 6"); A(f"s_add_u32 s10, s10, {FWS}")
    A(f"buffer_load_dwordx2 v[16:17], v8, s[48:51], s10 offen {gflag}")
    A("s_waitcnt vmcnt(0)")
    for st_ in (8, 16, 32):
        xreduce("v_add_f32", 16, 8, 9, (st_,)); xreduce("v_add_f32", 17, 10, 11, (st_,))
    A(f"s_mov_b32 s72, {f32(-math.log2(math.e))}")
    for (f, g) in ((16, 14), (17, 15)):
        bf16r(f"v{f}", f"v{f}")
        A(f"v_mul_f32 v8, s72, v{f}"); A("v_exp_f32 v8, v8"); A("v_add_f32 v8, 1.0, v8"); A("v_rcp_f32 v8, v8")
        A(f"v_mul_f32 v{g}, v{f}, v8"); bf16r(f"v{g}", f"v{g}")
    stamp(1)

    e.label("L_hpre")
    if iso: A("s_branch L_end")
    combine_setup(VPOS, VKO, VF)
    A("v_lshlrev_b32 v40, 16, v3"); A("v_lshl_add_u32 v40, v6, 4, v40")
    A("s_lshl_b32 s76, s4, 13"); A("s_lshl_b32 s72, s15, 11"); A("s_add_u32 s76, s76, s72"); A("s_lshl_b32 s72, s6, 8"); A("s_add_u32 s76, s76, s72")
    A(f"s_add_u32 s76, s76, {OWS}"); A("s_add_u32 s77, s76, 0x40000")
    A("v_lshlrev_b32 v42, 7, v3"); A("v_lshl_add_u32 v42, v6, 3, v42"); A("s_lshl_b32 s72, s15, 10"); A(f"s_add_u32 s72, s72, {L_A}"); A("v_add_u32 v42, s72, v42")
    A("v_and_b32 v8, 7, v0"); A("v_lshlrev_b32 v43, 7, v8"); A("v_lshl_add_u32 v43, v3, 4, v43"); A(f"v_add_u32 v43, {L_A}, v43")
    A("v_lshl_add_u32 v44, v3, 3, v4"); A("v_lshlrev_b32 v44, 8, v44"); A("v_lshl_add_u32 v44, v5, 3, v44")
    A("s_lshl_b32 s72, s15, 5"); A(f"s_add_u32 s72, s72, {L_WO}"); A("v_add_u32 v44, s72, v44")
    A("v_and_b32 v8, 1, v3"); A("v_lshlrev_b32 v8, 2, v8"); A("v_lshrrev_b32 v9, 1, v3"); A("v_lshl_add_u32 v8, v9, 1, v8")
    A("s_mov_b32 s72, 229376"); A("v_mul_lo_u32 v45, v8, s72"); A("v_lshl_add_u32 v45, v6, 3, v45")
    A("s_mul_i32 s72, s7, 7"); A("s_add_u32 s72, s72, s15"); A("s_lshl_b32 s72, s72, 6"); A("s_lshl_b32 s73, s4, 3"); A("s_add_u32 s72, s72, s73")
    A("s_add_u32 s72, s72, s6"); A("s_lshl_b32 s72, s72, 7"); A(f"s_add_u32 s79, s72, {YWS}"); A("s_add_u32 s78, s79, 32768")
    A("v_add_u32 v46, 229376, v45")
    A("s_mov_b32 s60, 0"); A("s_mov_b32 s61, -1")
    A(f"v_mul_u32_u24 v47, {LS}, v0")
    A(f"s_mul_i32 s68, s7, {8*LS}"); A(f"s_add_u32 s68, s68, {YM}"); A("s_lshl_b32 s72, s4, 3"); A("s_add_u32 s72, s72, s6"); A("s_lshl_b32 s72, s72, 2"); A("s_add_u32 s69, s68, s72")

    e.label("L_bar2")
    A("v_mov_b32 v36, s57"); A("v_mov_b32 v21, s56")
    A(f"v_add_u32 v35, {2*KOVS}, v{VPOS}")
    A("s_mov_b32 s62, 0x55555555"); A("s_mov_b32 s63, 0x55555555")
    A("s_waitcnt lgkmcnt(0)")
    A("s_barrier")
    A(f"ds_read_b128 v[24:27], v{VF}")
    A(f"ds_read_b32 v16, v{VPOS}"); A(f"ds_read_b32 v17, v{VPOS} offset:{KOVS}")
    A(f"ds_read_b32 v18, v35"); A(f"ds_read_b32 v19, v35 offset:{KOVS}")
    A("s_waitcnt lgkmcnt(0)")
    A("v_mul_f32 v16, v16, v24"); A("v_mul_f32 v18, v18, v26"); A("v_fmac_f32 v16, v17, v25"); A("v_fmac_f32 v18, v19, v27"); A("v_add_f32 v16, v16, v18")
    A(f"v_mov_b32_dpp v17, v16 quad_perm:[1,1,3,3] {DPP}")
    A("v_cvt_pk_bf16_f32 v20, v16, v17")
    A("s_mov_b64 exec, s[62:63]")
    A(f"buffer_store_dwordx2 v[20:21], v{VKO}, s[48:51], 0 offen sc1")
    A("s_mov_b64 exec, -1")
    stamp(4)
    A("s_cmp_lt_u32 s3, 4"); A("s_cbranch_scc1 L_exit")
    for c2 in range(2):
        for ks in range(2):
            r = 64 + 8 * c2 + 4 * ks
            A(f"ds_read_b64_tr_b16 v[{r}:{r+1}], v44 offset:{ks*8192 + c2*128}")
            A(f"ds_read_b64_tr_b16 v[{r+2}:{r+3}], v44 offset:{ks*8192 + c2*128 + 1024}")
    A("s_cmp_lg_u32 s3, 4"); A("s_cbranch_scc1 L_owait")
    A("s_lshl_b32 s75, s4, 2"); A("s_lshr_b32 s72, s5, 3"); A("s_add_u32 s75, s75, s72"); A(f"s_mul_i32 s75, s75, {LS}"); A(f"s_add_u32 s75, s75, {OM}")
    hint_poll("oh", "s75", 32, 48, 49, osleep)
    A("v_mov_b32 v48, 1"); A("ds_write_b32 v2, v48 offset:4")
    A("s_branch L_ogo")
    e.label("L_owait")
    lds_wait("ow", 2, 4, 48, 1, tgt="L_ogo")
    e.label("L_ogo")
    def oloads():
        A("buffer_load_dwordx4 v[16:19], v40, s[48:51], s76 offen sc1")
        A("buffer_load_dwordx4 v[20:23], v40, s[48:51], s77 offen sc1")
    poll("opoll", oloads, lambda: check32([17, 19, 21, 23], 48, 49), sleep=1)
    A("ds_write2_b32 v42, v16, v18 offset0:0 offset1:1"); A("ds_write2_b32 v42, v20, v22 offset0:128 offset1:129")
    A("s_cmp_lg_u32 s3, 4"); A("s_cbranch_scc1 L_noyh")
    A("v_mov_b32 v48, s56")
    A("s_mov_b64 exec, 0xff")
    A("buffer_store_dword v48, v47, s[48:51], s69 offen sc1")
    A("s_mov_b64 exec, -1")
    e.label("L_noyh")
    stamp(5)
    A("s_waitcnt lgkmcnt(0)")
    A("s_barrier")
    for sp in range(4):
        for ks in range(2):
            r = 80 + 8 * sp + 4 * ks
            A(f"ds_read_b128 v[{r}:{r+3}], v43 offset:{sp*1024+ks*64}")
    n = 0
    for sp in range(4):
        for ks in range(2):
            r = 80 + 8 * sp + 4 * ks
            A(f"s_waitcnt lgkmcnt({7-n})"); n += 1
            for c2 in range(2):
                D = 24 + 4 * c2
                C = "0" if (sp == 0 and ks == 0) else f"v[{D}:{D+3}]"
                A(f"v_mfma_f32_16x16x32_bf16 v[{D}:{D+3}], v[{r}:{r+3}], v[{64+8*c2+4*ks}:{67+8*c2+4*ks}], {C}")
    A("v_mov_b32 v17, s56"); A("v_mov_b32 v19, s56"); A("v_mov_b32 v21, s56"); A("v_mov_b32 v23, s56")
    for c2 in range(2):
        D = 24 + 4 * c2; t = 16 + 4 * c2
        A(f"v_cndmask_b32 v{t}, v{D}, v{D+2}, s[60:61]"); A(f"v_cndmask_b32 v{t+2}, v{D+1}, v{D+3}, s[60:61]")
        A(f"v_and_or_b32 v{t}, v{t}, s59, v36"); A(f"v_and_or_b32 v{t+2}, v{t+2}, s59, v36")
        if c2 == 1:
            A("s_cmp_eq_u32 s3, 7"); A("s_cbranch_scc1 L_ydone")
        so = "s79" if c2 == 0 else "s78"
        A(f"buffer_store_dwordx2 v[{t}:{t+1}], v45, s[48:51], {so} offen sc1")
        A(f"buffer_store_dwordx2 v[{t+2}:{t+3}], v46, s[48:51], {so} offen sc1")
    stamp(6)
    A("s_branch L_exit")
    e.label("L_ydone")
    stamp(6)
    A("s_cmp_eq_u32 s4, 7"); A("s_cbranch_scc1 L_fin")
    A("s_lshl_b32 s10, s84, 13"); A(f"s_add_u32 s10, s10, {YWS}"); A("s_add_u32 s11, s10, 4096")
    srd(44, 32, 33, 7168)
    def yloads():
        for i in range(8):
            A(f"buffer_load_dwordx4 v[{16+4*i}:{19+4*i}], v7, s[48:51], s{10+(i>>2)} offen offset:{(i&3)*1024} sc1")
    A(f"s_mul_i32 s75, s6, {LS}"); A("s_add_u32 s75, s75, s68")
    hint_poll("yh", "s75", 64, 48, 49, osleep)
    poll("ypoll", yloads, lambda: check32([17 + 2 * i for i in range(16)], 48, 49), sleep=1)
    for o in (0, 2):
        A(f"v_add_f32 v{16+o}, v{16+o}, v{20+o}"); A(f"v_add_f32 v{24+o}, v{24+o}, v{28+o}"); A(f"v_add_f32 v{32+o}, v{32+o}, v{36+o}"); A(f"v_add_f32 v{40+o}, v{40+o}, v{44+o}")
    for o in (0, 2):
        A(f"v_add_f32 v{16+o}, v{16+o}, v{24+o}"); A(f"v_add_f32 v{32+o}, v{32+o}, v{40+o}")
    for o in (0, 2): A(f"v_add_f32 v{16+o}, v{16+o}, v{32+o}")
    for st_ in (8, 16, 32):
        xreduce("v_add_f32", 16, 8, 9, (st_,)); xreduce("v_add_f32", 18, 10, 11, (st_,))
    bf16r("v16", "v16"); bf16r("v18", "v18")
    A("v_mul_f32 v16, v16, v14"); A("v_mul_f32 v18, v18, v15")
    bf16r("v16", "v16"); bf16r("v18", "v18")
    A("v_lshlrev_b32 v8, 16, v13"); A("v_and_b32 v9, 0xffff0000, v13")
    A("v_add_f32 v16, v16, v8"); A("v_add_f32 v18, v18, v9")
    A("v_cvt_pk_bf16_f32 v16, v16, v18")
    A("s_mov_b64 exec, 0xff")
    A("buffer_store_dword v16, v12, s[44:47], 0 offen")
    A("s_mov_b64 exec, -1")
    A("s_cmp_lg_u32 s2, 0"); A("s_cbranch_scc1 L_fin")
    A("v_mov_b32 v16, s56"); A("v_mov_b32 v17, s58"); A("v_mov_b32 v18, 0")
    A("s_mov_b64 exec, 1")
    A("buffer_store_dwordx2 v[16:17], v18, s[48:51], 0 offen")
    A("s_mov_b64 exec, -1")
    e.label("L_fin")
    if stamps: A("s_waitcnt vmcnt(0)")
    stamp(7)
    e.label("L_exit")
    if stamps:
        A("s_waitcnt vmcnt(0)")
        A("s_mov_b64 exec, 1")
        A("s_lshl_b32 s14, s2, 3"); A("s_add_u32 s14, s14, s3"); A("s_lshl_b32 s14, s14, 7"); A("s_add_u32 s14, s14, 0x10100000"); A("v_mov_b32 v1, s14")
        for q in range(4):
            for i in range(4): A(f"v_mov_b32 v{8+i}, s{86+4*q+i}")
            A(f"global_store_dwordx4 v1, v[8:11], s[36:37] offset:{q*16}")
        A("s_cmp_lg_u32 s3, 7"); A("s_cbranch_scc1 L_end")
        A("v_mov_b32 v8, s86"); A("v_mov_b32 v9, s87"); A("v_mov_b32 v10, s100"); A("v_mov_b32 v11, s101")
        A("s_lshl_b32 s14, s2, 4"); A("s_add_u32 s14, s14, 0x10000000"); A("v_mov_b32 v1, s14")
        A("global_store_dwordx4 v1, v[8:11], s[36:37]")
    e.label("L_end")
    A("s_endpgm")
    e.raw('.section .rodata,"a"'); e.raw(".p2align 6"); e.raw(f".amdhsa_kernel {KN}")
    e.raw("  .amdhsa_next_free_vgpr 256"); e.raw("  .amdhsa_next_free_sgpr 102"); e.raw("  .amdhsa_accum_offset 256")
    e.raw("  .amdhsa_group_segment_fixed_size 0"); e.raw("  .amdhsa_kernarg_size 88"); e.raw("  .amdhsa_user_sgpr_count 2")
    e.raw("  .amdhsa_user_sgpr_kernarg_segment_ptr 1"); e.raw("  .amdhsa_system_sgpr_workgroup_id_x 1"); e.raw(".end_amdhsa_kernel")
    assert e.maxv <= 256 and e.maxs <= 102, (e.maxv, e.maxs)
    return e.text()

if __name__ == "__main__":
    out = sys.argv[1]
    kw = eval("dict(" + (sys.argv[2] if len(sys.argv) > 2 else "") + ")")
    open(out, "w").write(gen(**kw))
```

```python
import sys, math, struct
from emit import Emit
KN = "recurrent_scan__gqa_block_cached__dense_activation_relu__decode_kernel"
QWS = 0x1000
HWS = 0x50000
FWS = 0x70000
OWS = 0x100000
YWS = 0x200000
MB = 0x400000
LS = 4352
QM = MB; HM = MB + 64 * LS; FM = HM + 8 * LS; SM = FM + 56 * LS; OM = SM + 64 * LS; YM = OM + 32 * LS
WS_SIZE = 0x600000
assert YM + 32 * LS <= WS_SIZE
FAR = WS_SIZE - 256
SPIN_MAX = 1 << 17
def f32(x): return "0x%08x" % struct.unpack("<I", struct.pack("<f", x))[0]

def lds_map(NL):
    d = {}
    d['KOVS'] = NL * 1024
    d['T1'] = 4 * NL * 1024
    d['WO'] = d['T1'] + 28672
    d['Q'] = d['WO'] + 16384
    d['S'] = d['Q'] + 1024
    d['F'] = d['S'] + 64
    d['FLAG'] = d['F'] + 32
    d['SIZE'] = d['FLAG'] + 64
    return d
LDS_SIZE = lds_map(28)['SIZE']

def gen(B=50, NL=28, W=8, LMIN=4, stamps=False, wflag="nt", kvflag="nt", catch=2, hprio=3, qsleep=4, hsleep=32, osleep=3,
        ohg=56, xflag="", gflag="sc1", iso=0, vflag=None, LS=4352, warm=0, xmap=0, tsleep=1, vwarm=1, pw=0, f1late=0):
    if vflag is None: vflag = kvflag
    QM = MB; HM = MB + 64 * LS; FM = HM + 8 * LS; SM = FM + 56 * LS; OM = SM + 64 * LS; YM = OM + 32 * LS
    M = lds_map(NL)
    L_T1, L_WO, L_Q, L_S, L_F, L_FLAG, KOVS = M['T1'], M['WO'], M['Q'], M['S'], M['F'], M['FLAG'], M['KOVS']
    L_A = L_T1
    assert M['SIZE'] <= 163840
    e = Emit(); A = e
    e.raw(f"; @launch grid=(256,1,1) block=(512,1,1) lds={M['SIZE']}")
    e.raw('.amdgcn_target "amdgcn-amd-amdhsa--gfx950"')
    e.raw(".text"); e.raw(f".globl {KN}"); e.raw(".p2align 8"); e.raw(f".type {KN},@function"); e.raw(f"{KN}:")
    uid = [0]
    def L(name):
        uid[0] += 1
        return f"L_{name}_{uid[0]}"
    def stamp(i):
        if not stamps: return
        A(f"s_memrealtime s[{86+2*i}:{87+2*i}]"); A("s_waitcnt lgkmcnt(0)")
    def srd(d, lo, hi, size, add=None):
        if add is None:
            A(f"s_mov_b32 s{d}, s{lo}"); A(f"s_and_b32 s{d+1}, s{hi}, 0xffff")
        else:
            A(f"s_add_u32 s{d}, s{lo}, {add}"); A(f"s_addc_u32 s{d+1}, s{hi}, 0"); A(f"s_and_b32 s{d+1}, s{d+1}, 0xffff")
        A(f"s_mov_b32 s{d+2}, {size}"); A(f"s_mov_b32 s{d+3}, 0x20000")
    def tags():
        A("s_lshl_b32 s56, s52, 1"); A("s_sub_u32 s56, s56, s38"); A("s_add_u32 s56, s56, 1")
        A("s_lshl_b32 s58, s53, 1"); A("s_sub_u32 s58, s58, s39"); A("s_add_u32 s58, s58, 1")
        A("s_and_b32 s57, s58, 0xff"); A("s_mov_b32 s59, 0xffffff00")
    def bf16r(d, s):
        A(f"v_cvt_pk_bf16_f32 {d}, {s}, {s}"); A(f"v_lshlrev_b32 {d}, 16, {d}")
    def setexec(m):
        if m == -1: A("s_mov_b64 exec, -1"); return
        A(f"s_mov_b32 s70, {m & 0xffffffff}"); A(f"s_mov_b32 s71, {m >> 32}"); A("s_mov_b64 exec, s[70:71]")
    def check40(grans, acc_a, acc_b, tmp1, tmp2):
        first = True
        for i in range(0, len(grans), 2):
            pair = grans[i:i+2]
            (a0, a1) = pair[0]; (b0, b1) = pair[1] if len(pair) > 1 else pair[0]
            A(f"v_xor_b32 v{tmp1}, s56, v{a1}"); A(f"v_xor_b32 v{tmp2}, s56, v{b1}")
            if first: A(f"v_or_b32 v{acc_a}, v{tmp1}, v{tmp2}")
            else: A(f"v_or3_b32 v{acc_a}, v{acc_a}, v{tmp1}, v{tmp2}")
            A(f"v_xor_b32 v{tmp1}, s57, v{a0}"); A(f"v_xor_b32 v{tmp2}, s57, v{b0}")
            if first: A(f"v_or_b32 v{acc_b}, v{tmp1}, v{tmp2}")
            else: A(f"v_or3_b32 v{acc_b}, v{acc_b}, v{tmp1}, v{tmp2}")
            first = False
        A(f"v_and_b32 v{acc_b}, 0xff, v{acc_b}"); A(f"v_or_b32 v{acc_a}, v{acc_a}, v{acc_b}")
        A(f"v_cmp_ne_u32 vcc, 0, v{acc_a}")
    def check32(tagregs, mn, mx):
        t = tagregs
        A(f"v_min3_u32 v{mn}, v{t[0]}, v{t[1]}, v{t[2]}"); A(f"v_max3_u32 v{mx}, v{t[0]}, v{t[1]}, v{t[2]}")
        i = 3
        while i < len(t):
            a = t[i]; b = t[i+1] if i + 1 < len(t) else t[i]
            A(f"v_min3_u32 v{mn}, v{mn}, v{a}, v{b}"); A(f"v_max3_u32 v{mx}, v{mx}, v{a}, v{b}")
            i += 2
        A(f"v_xor_b32 v{mn}, s56, v{mn}"); A(f"v_xor_b32 v{mx}, s56, v{mx}"); A(f"v_or_b32 v{mn}, v{mn}, v{mx}")
        A(f"v_cmp_ne_u32 vcc, 0, v{mn}")
    def poll(name, loads, chk, sleep=2):
        lp = L(name); done = L(name + "_ok")
        A("s_mov_b32 s80, 0")
        e.label(lp)
        loads()
        A("s_waitcnt vmcnt(0)")
        chk()
        A(f"s_cbranch_vccz {done}")
        A("s_add_u32 s80, s80, 1"); A(f"s_cmp_ge_u32 s80, {SPIN_MAX}"); A(f"s_cbranch_scc1 {done}")
        if sleep: A(f"s_sleep {sleep}")
        A(f"s_branch {lp}")
        e.label(done)
    def hint_poll(name, soff, n, vt1, vt2, sleep):
        A(f"v_min_u32 v{vt2}, {n-1}, v0"); A(f"v_lshlrev_b32 v{vt2}, 2, v{vt2}")
        poll(name, lambda: A(f"buffer_load_dword v{vt1}, v{vt2}, s[48:51], {soff} offen sc1"),
             lambda: A(f"v_cmp_ne_u32 vcc, s56, v{vt1}"), sleep)
    def flag_poll(name, soff, n, vt, va, sleep):
        A(f"v_min_u32 v{va}, {n-1}, v0"); A(f"v_lshlrev_b32 v{va}, 3, v{va}")
        def chk():
            A(f"v_xor_b32 v{vt}, s56, v{vt}"); A(f"v_xor_b32 v{vt+1}, s58, v{vt+1}"); A(f"v_or_b32 v{vt}, v{vt}, v{vt+1}")
            A(f"v_cmp_ne_u32 vcc, 0, v{vt}")
        poll(name, lambda: A(f"buffer_load_dwordx2 v[{vt}:{vt+1}], v{va}, s[48:51], {soff} offen sc1"), chk, sleep)
    def lds_wait(name, vaddr, off, vt, sleep, tgt=None):
        lp = L(name); done = tgt or L(name + "_ok")
        e.label(lp)
        A(f"ds_read_b32 v{vt}, v{vaddr} offset:{off}"); A("s_waitcnt lgkmcnt(0)"); A(f"v_readfirstlane_b32 s13, v{vt}")
        A("s_cmp_lg_u32 s13, 0"); A(f"s_cbranch_scc1 {done}"); A(f"s_sleep {sleep}"); A(f"s_branch {lp}")
        if tgt is None: e.label(done)
    DPP = "row_mask:0xf bank_mask:0xf"
    def xreduce(op, v, t1, t2, steps):
        for st in steps:
            if st == 1: A(f"{op}_dpp v{v}, v{v}, v{v} quad_perm:[1,0,3,2] {DPP}")
            elif st == 2: A(f"{op}_dpp v{v}, v{v}, v{v} quad_perm:[2,3,0,1] {DPP}")
            elif st == 4: A(f"{op}_dpp v{v}, v{v}, v{v} row_half_mirror {DPP}")
            elif st == 'r4': A(f"{op}_dpp v{v}, v{v}, v{v} row_ror:4 {DPP}")
            elif st == 8: A(f"{op}_dpp v{v}, v{v}, v{v} row_ror:8 {DPP}")
            elif st in (16, 32):
                A(f"v_mov_b32 v{t1}, v{v}"); A(f"v_mov_b32 v{t2}, v{v}")
                A(f"v_permlane{st}_swap_b32 v{t1}, v{t2}")
                A(f"{op} v{v}, v{t1}, v{t2}")

    A("s_cmp_ge_u32 s2, 256"); A("s_cbranch_scc1 L_end")
    A("s_load_dwordx16 s[16:31], s[0:1], 0")
    A("s_load_dwordx4 s[32:35], s[0:1], 64")
    A("s_load_dwordx2 s[36:37], s[0:1], 80")
    if stamps:
        A("s_memrealtime s[86:87]")
        for i in range(88, 102): A(f"s_mov_b32 s{i}, 0")
    A("v_lshrrev_b32 v1, 6, v0"); A("v_readfirstlane_b32 s3, v1"); A("v_and_b32 v0, 63, v0")
    A("s_and_b32 s4, s2, 7"); A("s_lshr_b32 s5, s2, 3"); A("s_lshr_b32 s6, s5, 2"); A("s_and_b32 s7, s5, 3")
    if xmap == 1: A("s_xor_b32 s4, s4, s6")
    if xmap == 2: A("s_xor_b32 s4, s4, s6"); A("s_lshl_b32 s8, s7, 1"); A("s_xor_b32 s4, s4, s8")
    A("s_lshl_b32 s8, s6, 3"); A("s_add_u32 s8, s8, s4")
    A("s_lshl_b32 s9, s8, 2"); A("s_add_u32 s9, s9, s7")
    A("s_cmp_ge_u32 s3, 4"); A("s_cbranch_scc1 L_helper")

    def combine_setup(vpos, vk, vf):
        A("s_lshr_b32 s70, s3, 2"); A("s_bfe_u32 s71, s3, 0x10001"); A("s_and_b32 s72, s3, 1")
        A("s_lshl_b32 s73, s71, 10")
        A("s_lshl_b32 s74, s72, 9"); A("s_add_u32 s73, s73, s74")
        A("s_lshl_b32 s74, s70, 7"); A("s_add_u32 s73, s73, s74")
        A(f"v_lshrrev_b32 v{vpos}, 5, v0"); A(f"v_lshlrev_b32 v{vpos}, 8, v{vpos}")
        A(f"v_and_b32 v{vk}, 7, v0"); A(f"v_lshl_add_u32 v{vpos}, v{vk}, 4, v{vpos}")
        A(f"v_bfe_u32 v{vk}, v0, 3, 2"); A(f"v_lshl_add_u32 v{vpos}, v{vk}, 2, v{vpos}")
        A(f"v_add_u32 v{vpos}, s73, v{vpos}")
        A("s_lshl_b32 s73, s9, 11"); A("s_lshl_b32 s74, s3, 8"); A("s_add_u32 s73, s73, s74"); A(f"s_add_u32 s73, s73, {OWS}")
        A(f"v_lshlrev_b32 v{vk}, 2, v0"); A(f"v_add_u32 v{vk}, s73, v{vk}")
        A("s_lshl_b32 s74, s70, 4"); A(f"s_add_u32 s74, s74, {L_F}"); A(f"v_mov_b32 v{vf}, s74")
    VPOS, VKO, VF = 38, 39, 37

    TMPK = 40; BUF0 = 56
    assert BUF0 + 4 * B <= 256
    def is_lds(n): return B <= n < B + NL
    def ridx(n): return n if n < B else n - NL
    def buf(n): r = BUF0 + 4 * (ridx(n) % B); return f"v[{r}:{r+3}]"
    A("v_lshrrev_b32 v3, 4, v0")
    A("v_bfe_u32 v4, v0, 2, 2"); A("v_and_b32 v5, 3, v0")
    A("v_lshlrev_b32 v1, 9, v4"); A("v_lshl_add_u32 v1, v3, 6, v1"); A("v_lshl_add_u32 v1, v5, 4, v1")
    A("v_and_b32 v5, 15, v0"); A("v_lshlrev_b32 v2, 9, v3"); A("v_lshl_add_u32 v2, v5, 4, v2")
    A("s_lshl_b32 s10, s9, 19"); A("s_lshl_b32 s11, s3, 11"); A("s_mov_b32 s12, s11")
    A(f"s_mul_i32 s14, s3, {KOVS}")
    A("s_waitcnt lgkmcnt(0)")
    srd(40, 18, 19, 0x80000, "s10"); srd(44, 20, 21, 0x80000, "s10")
    A("s_load_dwordx2 s[38:39], s[36:37], 0"); A(f"s_mov_b32 s54, {FAR}"); A("s_load_dwordx2 s[52:53], s[36:37], s54")
    vmops = []
    st = dict(ni=0, landed=0)
    def wait_landed(n):
        if st['landed'] >= n: return
        after = len(vmops) - 1 - vmops.index(n - 1)
        A(f"s_waitcnt vmcnt({after})"); st['landed'] = n
    def issue():
        n = st['ni']
        if n >= W: wait_landed(n - W + 1)
        half = n & 1
        if is_lds(n):
            A(f"s_add_u32 m0, s14, {(n - B) * 1024 - half * 256}")
            A(f"buffer_load_dwordx4 v1, s[40:43], s11 offen offset:{half*256} {kvflag} lds")
            if half: A("s_add_u32 s11, s11, 8192")
        elif n < 128:
            A(f"buffer_load_dwordx4 {buf(n)}, v1, s[40:43], s11 offen offset:{half*256} {kvflag}")
            if half: A("s_add_u32 s11, s11, 8192")
        else:
            A(f"buffer_load_dwordx4 {buf(n)}, v2, s[44:47], s12 offen offset:{half*256} {vflag}")
            if half: A("s_add_u32 s12, s12, 8192")
        st['ni'] += 1; vmops.append(n)
    for _ in range(W): issue()
    if vwarm:
        A("s_mov_b64 exec, 1")
        A("buffer_load_dword v35, v2, s[44:47], s12 offen nt")
        A("s_mov_b64 exec, -1")
        vmops.append('x')
    srd(48, 36, 37, WS_SIZE)
    for j in range(8):
        A(f"s_mov_b32 s{60+2*j}, {0x01010101 << j}"); A(f"s_mov_b32 s{61+2*j}, {0x01010101 << j}")
    A("v_and_b32 v32, 1, v0"); A("v_cmp_eq_u32 vcc, 1, v32")
    A("v_mov_b32 v33, 0xffff"); A("v_mov_b32 v34, 0xffff0000"); A("v_cndmask_b32 v33, v33, v34, vcc")
    A("v_bfe_u32 v32, v0, 1, 2")
    for r in range(4):
        A(f"v_cmp_eq_u32 vcc, {r}, v32"); A(f"v_cndmask_b32 v{4+r}, 0, v33, vcc")
    A("v_bfe_u32 v32, v0, 3, 1"); A("v_lshlrev_b32 v36, 9, v32"); A("v_lshl_add_u32 v36, v3, 6, v36")
    A("v_and_b32 v32, 3, v0"); A("v_lshl_add_u32 v36, v32, 4, v36"); A(f"v_add_u32 v36, {L_Q}, v36")
    A(f"v_mov_b32 v37, {L_FLAG}")
    A("v_lshlrev_b32 v3, 4, v0"); A("v_add_u32 v3, s14, v3")
    A("s_waitcnt lgkmcnt(0)")
    tags()
    A("s_barrier")
    while st['ni'] < B + NL: issue()
    stamp(5)
    if iso != 1: lds_wait("qwait", 37, 0, 32, 1)
    A("ds_read_b128 v[8:11], v36"); A("ds_read_b128 v[12:15], v36 offset:256")
    stamp(1)
    A("s_waitcnt lgkmcnt(0)")
    P = lambda r: 24 + r
    def kred(c):
        D = 16 + 4 * (c & 1)
        A(f"v_mov_b32_dpp v32, v{D} quad_perm:[0,0,0,0] {DPP}")
        for i in (1, 2, 3):
            A(f"v_add_f32_dpp v32, v{D+i}, v32 quad_perm:[{i},{i},{i},{i}] {DPP}")
        j = c & 7
        if j == 0: A(f"v_mov_b32 v{P(c>>3)}, v32")
        else: A(f"v_cndmask_b32 v{P(c>>3)}, v{P(c>>3)}, v32, s[{60+2*j}:{61+2*j}]")
    def lds_fetch(c):
        wait_landed(2 * c + 2)
        t = TMPK + 8 * (c & 1)
        A(f"ds_read_b128 v[{t}:{t+3}], v3 offset:{(2*c-B)*1024}")
        A(f"ds_read_b128 v[{t+4}:{t+7}], v3 offset:{(2*c+1-B)*1024}")
    def kcons(c):
        D = 16 + 4 * (c & 1)
        nxt = is_lds(2 * (c + 1))
        if is_lds(2 * c):
            t = TMPK + 8 * (c & 1)
            if nxt: lds_fetch(c + 1); A("s_waitcnt lgkmcnt(2)")
            else: A("s_waitcnt lgkmcnt(0)")
            a0, a1 = f"v[{t}:{t+3}]", f"v[{t+4}:{t+7}]"
        else:
            wait_landed(2 * c + 2)
            if nxt: lds_fetch(c + 1)
            a0, a1 = buf(2 * c), buf(2 * c + 1)
        A(f"v_mfma_f32_16x16x32_bf16 v[{D}:{D+3}], {a0}, v[8:11], 0")
        A(f"v_mfma_f32_16x16x32_bf16 v[{D}:{D+3}], {a1}, v[12:15], v[{D}:{D+3}]")
        if c > 0: kred(c - 1)
    def vprep(c):
        j = c & 7; r = c >> 3; pb = 32 + (c & 1); Bs = 8 + 4 * (c & 1)
        A(f"v_mov_b32_dpp v{pb}, v{P(r)} row_newbcast:{j} row_mask:0xf bank_mask:0x3")
        A(f"v_mov_b32_dpp v{pb}, v{P(r)} row_newbcast:{8+j} row_mask:0xf bank_mask:0xc")
        for i in range(4): A(f"v_and_b32 v{Bs+i}, v{pb}, v{4+i}")
    def vcons(c):
        Bs = 8 + 4 * (c & 1)
        wait_landed(128 + 2 * c + 2)
        for dh in range(2):
            O = 16 + 4 * dh
            C = "0" if c == 0 else f"v[{O}:{O+3}]"
            A(f"v_mfma_f32_16x16x32_bf16 v[{O}:{O+3}], {buf(128+2*c+dh)}, v[{Bs}:{Bs+3}], {C}")
        if c + 1 < 64: vprep(c + 1)
        if c == ohg:
            A(f"s_mul_i32 s13, s4, {4*LS}"); A("s_lshl_b32 s15, s5, 2"); A("s_add_u32 s13, s13, s15"); A(f"s_add_u32 s13, s13, {OM}")
            A(f"v_mul_u32_u24 v1, {LS}, v0")
            A("s_lshl_b32 s70, 1, s3"); A("s_mov_b32 s71, 0")
            A("v_mov_b32 v36, s56")
            A("s_mov_b64 exec, s[70:71]")
            A("buffer_store_dword v36, v1, s[48:51], s13 offen sc1")
            A("s_mov_b64 exec, -1")
            vmops.append('x')
    def softmax():
        kred(63)
        A(f"v_max3_f32 v34, v{P(0)}, v{P(1)}, v{P(2)}"); A(f"v_max3_f32 v34, v34, v{P(3)}, v{P(4)}")
        A(f"v_max3_f32 v34, v34, v{P(5)}, v{P(6)}"); A(f"v_max_f32 v34, v34, v{P(7)}")
        xreduce("v_max_f32", 34, 32, 33, (1, 2, 4, 16, 32))
        A(f"s_mov_b32 s13, {f32(math.log2(math.e) / 16.0)}")
        A("v_mul_f32 v34, s13, v34")
        for r in range(8): A(f"v_fma_f32 v{P(r)}, v{P(r)}, s13, -v34")
        for r in range(8): A(f"v_exp_f32 v{P(r)}, v{P(r)}")
        A(f"v_add_f32 v35, v{P(0)}, v{P(1)}")
        for r in range(2, 8): A(f"v_add_f32 v35, v35, v{P(r)}")
        for r in range(8): A(f"v_cvt_pk_bf16_f32 v{P(r)}, v{P(r)}, v{P(r)}")
        xreduce("v_add_f32", 35, 32, 33, (1, 2, 4, 16, 32))
        A("v_bfe_u32 v36, v0, 3, 1"); A("v_lshlrev_b32 v36, 5, v36"); A("s_lshl_b32 s13, s3, 3"); A(f"s_add_u32 s13, s13, {L_S}"); A("v_add_u32 v36, s13, v36")
        A("ds_write_b64 v36, v[34:35]")
        A("s_lshl_b32 s13, s3, 2"); A("v_add_u32 v37, s13, v37"); A("v_mov_b32 v36, 1")
        A("s_waitcnt lgkmcnt(0)")
        A("ds_write_b32 v37, v36 offset:8")
        combine_setup(VPOS, VKO, VF)
        stamp(3)
        vprep(0)
    nc = 0
    def consume():
        nonlocal nc
        if nc < 64: kcons(nc)
        else:
            if nc == 64: softmax()
            vcons(nc - 64)
        nc += 1
    def can_issue():
        n = st['ni']
        if n >= 256: return False
        ri = ridx(n) - B
        prev = ri if ri < B else ri + NL
        return prev // 2 < nc
    while nc < 128:
        lag = st['ni'] // 2 - nc
        consume()
        if lag > LMIN:
            for _ in range(catch - 1):
                if nc < 128 and st['ni'] // 2 - nc > LMIN: consume()
        for _ in range(2):
            if can_issue(): issue()
    A("ds_write_b128 v3, v[16:19]"); A("ds_write_b128 v3, v[20:23] offset:1024")
    stamp(2)
    if iso:
        stamp(7)
        A("s_cmp_lg_u32 s3, 0"); A("s_cbranch_scc1 L_exit")
        A("v_mov_b32 v8, s86"); A("v_mov_b32 v9, s87"); A("v_mov_b32 v10, s100"); A("v_mov_b32 v11, s101")
        A("s_lshl_b32 s14, s2, 4"); A("s_add_u32 s14, s14, 0x10000000"); A("v_mov_b32 v1, s14")
        A("s_mov_b64 exec, 1"); A("global_store_dwordx4 v1, v[8:11], s[36:37]"); A("s_mov_b64 exec, -1")
        A("s_branch L_exit")
    A("s_branch L_bar2")

    e.label("L_helper")
    if hprio: A(f"s_setprio {hprio}")
    if iso == 1: A("s_barrier"); A("s_branch L_end")
    A("s_sub_u32 s15, s3, 4")
    A("v_lshrrev_b32 v3, 4, v0"); A("v_bfe_u32 v4, v0, 2, 2"); A("v_and_b32 v5, 3, v0"); A("v_and_b32 v6, 15, v0")
    A(f"v_mov_b32 v2, {L_FLAG}"); A("v_lshlrev_b32 v7, 4, v0"); A("v_mov_b32 v12, 0")
    A("s_waitcnt lgkmcnt(0)")
    A("s_load_dwordx2 s[38:39], s[36:37], 0"); A(f"s_mov_b32 s54, {FAR}"); A("s_load_dwordx2 s[52:53], s[36:37], s54")
    srd(48, 36, 37, WS_SIZE)
    A("s_cmp_lg_u32 s3, 4"); A("s_cbranch_scc1 L_h123")
    WFR = lambda ks, cbk: 128 + 4 * (cbk * 7 + ks)
    XF = lambda ks: 64 + 4 * ks
    DD = lambda cbk: 40 + 4 * cbk
    def tile_dma():
        A("v_lshrrev_b32 v8, 3, v0"); A("v_mul_lo_u32 v8, v8, s10"); A("v_and_b32 v9, 7, v0"); A("v_lshl_add_u32 v8, v9, 4, v8")
        A("s_lshl_b32 s72, s10, 3")
        for i in range(28):
            A(f"s_mov_b32 m0, {L_T1 + i*1024}")
            A(f"buffer_load_dwordx4 v8, s[40:43], s11 offen {wflag} lds")
            A("s_add_u32 s11, s11, s72")
        A("v_lshl_add_u32 v9, v3, 3, v4"); A("v_lshlrev_b32 v9, 7, v9"); A("v_lshl_add_u32 v9, v5, 3, v9"); A(f"v_add_u32 v9, {L_T1}, v9")
        A("v_and_b32 v10, 7, v0"); A("v_mul_lo_u32 v10, v10, s14"); A("v_bfe_u32 v11, v0, 3, 1"); A("v_lshl_add_u32 v10, v11, 6, v10")
        A("v_lshl_add_u32 v10, v3, 4, v10"); A("v_add_u32 v10, s13, v10")
    def tile_mfma(extra):
        def rd(ks):
            A(f"s_waitcnt vmcnt({4*(6-ks)})")
            for cbk in range(4):
                w = WFR(ks, cbk)
                A(f"ds_read_b64_tr_b16 v[{w}:{w+1}], v9 offset:{ks*4096+cbk*32}")
                A(f"ds_read_b64_tr_b16 v[{w+2}:{w+3}], v9 offset:{ks*4096+cbk*32+512}")
        rd(0)
        per = (len(extra) + 27) // 28
        i = 0
        for ks in range(7):
            if ks + 1 < 7: A("s_waitcnt lgkmcnt(6)"); rd(ks + 1); A("s_waitcnt lgkmcnt(8)")
            else: A("s_waitcnt lgkmcnt(0)")
            for cbk in range(4):
                w = WFR(ks, cbk); D = DD(cbk)
                C = "0" if ks == 0 else f"v[{D}:{D+3}]"
                A(f"v_mfma_f32_16x16x32_bf16 v[{D}:{D+3}], v[{w}:{w+3}], v[{XF(ks)}:{XF(ks)+3}], {C}")
                for x in extra[i * per:(i + 1) * per]: A(x)
                i += 1
    def publish():
        for cp in range(2):
            a, b_ = DD(2 * cp), DD(2 * cp + 1)
            for i in range(4): A(f"v_mov_b32_dpp v{a+i}, v{b_+i} row_ror:8 row_mask:0xf bank_mask:0xc")
            A(f"buffer_store_dwordx4 v[{a}:{a+3}], v10, s[48:51], 0 offen offset:{cp*128} sc1")
        A("v_mov_b32 v16, s56"); A("v_mov_b32 v17, s58")
        A("s_waitcnt vmcnt(0)")
        A("s_mov_b32 s67, 0"); A("s_mov_b64 exec, s[66:67]")
        A("buffer_store_dwordx2 v[16:17], v13, s[48:51], s75 offen sc1")
        A("s_mov_b64 exec, -1")
    A("s_cmp_ge_u32 s5, 23"); A("s_cbranch_scc1 L_h0late")
    A("s_cmp_ge_u32 s5, 16"); A("s_cbranch_scc1 L_f1")
    A("s_lshr_b32 s82, s5, 1"); A("s_and_b32 s83, s5, 1")
    srd(40, 22, 23, 448 * 8192)
    A("s_mov_b32 s10, 8192")
    A(f"s_mul_i32 s11, s83, {224*8192}"); A("s_lshl_b32 s12, s4, 10"); A("s_add_u32 s11, s11, s12"); A("s_lshl_b32 s12, s82, 7"); A("s_add_u32 s11, s11, s12")
    A("s_lshl_b32 s13, s83, 17"); A("s_lshl_b32 s12, s4, 11"); A("s_add_u32 s13, s13, s12"); A("s_lshl_b32 s12, s82, 8"); A("s_add_u32 s13, s13, s12"); A(f"s_add_u32 s13, s13, {QWS}")
    A("s_mov_b32 s14, 16384")
    A(f"s_mul_i32 s75, s4, {LS}"); A("s_lshl_b32 s12, s5, 3"); A("s_add_u32 s75, s75, s12"); A(f"s_add_u32 s75, s75, {QM}")
    A(f"v_mul_u32_u24 v13, {8*LS}, v0"); A("s_mov_b32 s66, 0xff")
    A("s_branch L_gemv")
    e.label("L_f1")
    if f1late:
        A("s_waitcnt lgkmcnt(0)"); tags(); A("s_barrier")
        lds_wait("f1w", 2, 0, 8, 8)
    A("s_mul_i32 s82, s4, 7"); A("s_add_u32 s82, s82, s5"); A("s_sub_u32 s82, s82, 16"); A("s_and_b32 s83, s82, 1"); A("s_lshr_b32 s82, s82, 1")
    srd(40, 28, 29, 448 * 3584)
    A("s_mov_b32 s10, 3584")
    A(f"s_mul_i32 s11, s83, {224*3584}"); A("s_lshl_b32 s12, s82, 7"); A("s_add_u32 s11, s11, s12")
    A(f"s_mul_i32 s13, s83, {8*7168}"); A("s_lshl_b32 s12, s82, 8"); A("s_add_u32 s13, s13, s12"); A(f"s_add_u32 s13, s13, {HWS}")
    A("s_mov_b32 s14, 7168")
    A("s_lshl_b32 s12, s82, 1"); A("v_add_u32 v13, s12, v0"); A("v_mul_u32_u24 v13, 9363, v13"); A("v_lshrrev_b32 v13, 16, v13")
    A("v_mul_u32_u24 v14, 7, v13"); A("v_lshrrev_b32 v14, 1, v14"); A("v_sub_u32 v14, s82, v14"); A("v_lshlrev_b32 v14, 4, v14")
    A(f"v_mul_u32_u24 v13, {LS}, v13"); A("v_add_u32 v13, v13, v14")
    A("s_lshl_b32 s75, s83, 3"); A(f"s_add_u32 s75, s75, {HM}"); A("s_mov_b32 s66, 3")
    e.label("L_gemv")
    srd(44, 16, 17, 7168)
    A("v_and_b32 v14, 7, v0"); A("v_mul_u32_u24 v14, 896, v14"); A("v_lshl_add_u32 v14, v3, 4, v14")
    A("s_mul_i32 s72, s83, 448"); A("s_sub_u32 s73, 448, s72")
    setexec(0x00ff00ff00ff00ff)
    for ks in range(14):
        A(f"buffer_load_dwordx4 v[{XF(ks)}:{XF(ks)+3}], v14, s[44:47], s{72 + ks // 7} offen offset:{(ks % 7)*64} {xflag}")
    A("s_mov_b64 exec, -1")
    tile_dma()
    A("s_not_b64 exec, s[70:71]")
    for ks in range(14):
        for i in range(4): A(f"v_mov_b32 v{XF(ks)+i}, 0x3f803f80")
    A("s_mov_b64 exec, -1")
    A("v_and_b32 v22, 7, v0"); A("v_lshlrev_b32 v20, 2, v22"); A("v_lshrrev_b32 v21, 2, v22"); A("v_lshl_add_u32 v21, v21, 6, v20"); A("v_add_u32 v20, 128, v20")
    for i, m in enumerate((0x22222222, 0x44444444, 0x88888888)):
        A(f"s_mov_b32 s{60+2*i}, {m}"); A(f"s_mov_b32 s{61+2*i}, {m}")
    if f1late:
        A("s_cmp_ge_u32 s5, 16"); A("s_cbranch_scc1 L_gnb")
    A("s_waitcnt lgkmcnt(0)"); tags(); A("s_barrier")
    if f1late: e.label("L_gnb")
    A("s_waitcnt vmcnt(28)")
    for ks in range(14):
        C = "0" if ks == 0 else "v[16:19]"
        A(f"v_mfma_f32_16x16x32_bf16 v[16:19], v[{XF(ks)}:{XF(ks)+3}], v[{XF(ks)}:{XF(ks)+3}], {C}")
    A("v_cndmask_b32 v22, v16, v17, s[60:61]"); A("v_cndmask_b32 v22, v22, v18, s[62:63]"); A("v_cndmask_b32 v22, v22, v19, s[64:65]")
    A("ds_bpermute_b32 v24, v20, v16"); A("ds_bpermute_b32 v25, v21, v22")
    A(f"s_mov_b32 s72, {f32(1.0/448.0)}"); A(f"s_mov_b32 s73, {f32(1e-5)}")
    A("s_waitcnt lgkmcnt(0)")
    def rb(r): return [f"v_cvt_pk_bf16_f32 v{r}, v{r}, v{r}", f"v_lshlrev_b32 v{r}, 16, v{r}"]
    stat = ["v_mul_f32 v24, s72, v24", "v_mul_f32 v25, s72, v25", "v_fma_f32 v25, -v24, v24, v25", "v_max_f32 v25, 0, v25"] + rb(25) + \
           ["v_add_f32 v25, s73, v25"] + rb(25) + ["v_sqrt_f32 v25, v25"] + rb(25) + ["v_rcp_f32 v25, v25"] + rb(24)
    tile_mfma(stat)
    for cbk in range(4):
        for i in range(4):
            r = DD(cbk) + i
            A(f"v_mul_f32_dpp v26, v{r}, v24 row_ror:8 {DPP}")
            A(f"v_sub_f32 v{r}, v{r}, v26"); A(f"v_mul_f32 v{r}, v{r}, v25")
    publish()
    stamp(1)
    A("s_branch L_hpre")
    e.label("L_h0late")
    A("s_waitcnt lgkmcnt(0)"); tags(); A("s_barrier")
    A("s_cmp_ge_u32 s5, 30"); A("s_cbranch_scc1 L_hpre")
    A("s_sub_u32 s82, s5, 23")
    srd(40, 30, 31, 1792 * 896)
    A("s_mov_b32 s10, 896")
    A(f"s_mul_i32 s11, s4, {224*896}"); A("s_lshl_b32 s12, s82, 7"); A("s_add_u32 s11, s11, s12")
    A(f"s_mul_i32 s13, s4, {8*1792}"); A("s_lshl_b32 s12, s82, 8"); A("s_add_u32 s13, s13, s12"); A(f"s_add_u32 s13, s13, {FWS}")
    A("s_mov_b32 s14, 1792")
    A(f"s_mul_i32 s75, s4, {LS}"); A(f"s_add_u32 s75, s75, {HM}")
    flag_poll("hf", "s75", 8, 16, 18, hsleep)
    A("v_and_b32 v14, 7, v0"); A("v_mul_u32_u24 v14, 7168, v14"); A("v_lshl_add_u32 v14, v3, 5, v14"); A("v_bfe_u32 v15, v0, 3, 1"); A("v_lshl_add_u32 v14, v15, 4, v14")
    A(f"s_mul_i32 s72, s4, 896"); A(f"s_add_u32 s72, s72, {HWS}"); A(f"s_add_u32 s73, s72, {8*7168}")
    for kh in range(2):
        for k in range(7):
            r = 64 + 4 * (kh * 7 + k)
            A(f"buffer_load_dwordx4 v[{r}:{r+3}], v14, s[48:51], s{72+kh} offen offset:{k*128} {gflag}")
    tile_dma()
    A(f"s_mul_i32 s75, s82, {8*LS}"); A("s_lshl_b32 s12, s4, 3"); A("s_add_u32 s75, s75, s12"); A(f"s_add_u32 s75, s75, {FM}")
    A(f"v_mul_u32_u24 v13, {LS}, v0"); A("s_mov_b32 s66, 0xff")
    A("s_waitcnt vmcnt(28)")
    for k in range(7):
        a = 64 + 4 * k; b_ = 92 + 4 * k
        for i in range(4): A(f"v_add_f32 v{a+i}, v{a+i}, v{b_+i}")
        for i in range(4): A(f"v_max_f32 v{a+i}, 0, v{a+i}")
        A(f"v_cvt_pk_bf16_f32 v{a}, v{a}, v{a+1}"); A(f"v_cvt_pk_bf16_f32 v{a+1}, v{a+2}, v{a+3}")
        A(f"v_mov_b32_dpp v{a+2}, v{a} row_ror:8 {DPP}"); A(f"v_mov_b32_dpp v{a+3}, v{a+1} row_ror:8 {DPP}")
    tile_mfma([])
    publish()
    stamp(1)
    A("s_branch L_hpre")

    e.label("L_h123")
    A("s_cmp_eq_u32 s3, 6"); A("s_cbranch_scc1 L_h2")
    A("s_waitcnt lgkmcnt(0)"); tags(); A("s_barrier")
    A("s_cmp_eq_u32 s3, 7"); A("s_cbranch_scc1 L_h3")
    if warm:
        srd(44, 32, 33, 7168)
        A("v_mov_b32 v8, 0")
        A("buffer_load_dword v16, v8, s[44:47], 0 offen")
        A("v_and_b32 v9, 31, v0"); A(f"v_mul_u32_u24 v9, {WS_SIZE // 32}, v9"); A("s_lshl_b32 s72, s2, 8"); A("v_add_u32 v9, s72, v9")
        A("buffer_load_dword v17, v9, s[48:51], 0 offen")
    lds_wait("h1w", 2, 0, 8, 8)
    srd(40, 24, 25, 4096 * 896)
    A("v_mul_u32_u24 v8, 896, v3"); A("v_lshl_add_u32 v8, v6, 4, v8")
    A("s_lshl_b32 s11, s4, 3"); A("s_add_u32 s11, s11, s6"); A(f"s_mul_i32 s11, s11, {64*896}")
    A("s_mul_i32 s12, s7, 224"); A("s_add_u32 s11, s11, s12")
    setexec(0x3fff3fff3fff3fff)
    for i in range(16):
        A(f"s_mov_b32 m0, {L_WO + i*1024}")
        A(f"buffer_load_dwordx4 v8, s[40:43], s11 offen {wflag} lds")
        A(f"s_add_u32 s11, s11, {4*896}")
    A("s_mov_b64 exec, -1")
    A("s_waitcnt vmcnt(0)")
    stamp(2)
    A("s_branch L_hpre")
    e.label("L_h2")
    A("v_mov_b32 v8, 0"); A("v_mov_b32 v9, 0"); A("v_mov_b32 v10, 0"); A("v_mov_b32 v11, 0")
    A("ds_write_b128 v2, v[8:11]"); A("ds_write_b64 v2, v[8:9] offset:16")
    A("s_lshl_b32 s10, s6, 14"); A("s_lshl_b32 s11, s4, 11"); A("s_add_u32 s10, s10, s11"); A(f"s_add_u32 s10, s10, {QWS}"); A("s_add_u32 s11, s10, 0x20000")
    A("v_lshlrev_b32 v9, 3, v0"); A(f"v_add_u32 v9, {L_Q}, v9")
    A(f"s_mul_i32 s75, s8, {LS}"); A(f"s_add_u32 s75, s75, {QM}")
    A("s_waitcnt lgkmcnt(0)"); tags(); A("s_barrier")
    flag_poll("qf", "s75", 16, 16, 18, qsleep)
    stamp(1)
    for kh in range(2):
        for t in range(2):
            r = 16 + 8 * kh + 4 * t
            A(f"buffer_load_dwordx4 v[{r}:{r+3}], v7, s[48:51], s{10+kh} offen offset:{t*1024} {gflag}")
    A("s_waitcnt vmcnt(0)")
    for i in range(8): A(f"v_add_f32 v{16+i}, v{16+i}, v{24+i}")
    for t in range(2):
        A(f"v_cvt_pk_bf16_f32 v{32+2*t}, v{16+4*t}, v{17+4*t}"); A(f"v_cvt_pk_bf16_f32 v{33+2*t}, v{18+4*t}, v{19+4*t}")
        A(f"ds_write_b64 v9, v[{32+2*t}:{33+2*t}] offset:{t*512}")
    A("s_waitcnt lgkmcnt(0)")
    A("v_mov_b32 v8, 1"); A("ds_write_b32 v2, v8")
    stamp(3)
    if iso: A("s_branch L_end")
    lp = L("kd"); dn = L("kd_ok")
    e.label(lp)
    A("ds_read_b64 v[8:9], v2 offset:8"); A("ds_read_b64 v[10:11], v2 offset:16"); A("s_waitcnt lgkmcnt(0)")
    A("v_and_b32 v8, v8, v9"); A("v_and_b32 v10, v10, v11"); A("v_and_b32 v8, v8, v10"); A("v_readfirstlane_b32 s13, v8")
    A("s_cmp_lg_u32 s13, 0"); A(f"s_cbranch_scc1 {dn}"); A("s_sleep 16"); A(f"s_branch {lp}")
    e.label(dn)
    A("v_and_b32 v8, 7, v0"); A("v_lshlrev_b32 v9, 3, v8"); A(f"v_add_u32 v9, {L_S}, v9")
    A("ds_read_b64 v[16:17], v9"); A("s_waitcnt lgkmcnt(0)")
    A("v_mov_b32 v18, v16"); xreduce("v_max_f32", 18, 0, 0, (1, 2)); A("v_and_b32 v18, s59, v18")
    A("v_sub_f32 v19, v16, v18"); A("v_exp_f32 v19, v19"); A("v_mul_f32 v19, v19, v17"); xreduce("v_add_f32", 19, 0, 0, (1, 2))
    A("v_and_b32 v10, 1, v0"); A("v_cmp_eq_u32 vcc, 1, v10"); A("v_cndmask_b32 v20, v18, v19, vcc")
    A("v_mov_b32 v11, s57"); A("v_and_or_b32 v20, v20, s59, v11"); A("v_mov_b32 v21, s56")
    A("v_bfe_u32 v11, v0, 2, 1"); A("v_lshlrev_b32 v11, 4, v11"); A("v_lshl_add_u32 v11, v10, 3, v11")
    A(f"s_mul_i32 s75, s8, {LS}"); A(f"s_add_u32 s75, s75, {SM}"); A("s_lshl_b32 s72, s7, 5"); A("s_add_u32 s72, s72, s75")
    A("s_mov_b64 exec, 0x33")
    A("buffer_store_dwordx2 v[20:21], v11, s[48:51], s72 offen sc1")
    A("s_mov_b64 exec, -1")
    A("v_lshlrev_b32 v11, 3, v6")
    poll("sx", lambda: A("buffer_load_dwordx2 v[22:23], v11, s[48:51], s75 offen sc1"), lambda: check40([(22, 23)], 24, 25, 26, 27), sleep=16)
    A("v_and_b32 v22, s59, v22")
    A(f"v_mov_b32_dpp v24, v22 quad_perm:[0,0,2,2] {DPP}")
    A("v_mov_b32 v25, v24"); xreduce("v_max_f32", 25, 0, 0, ('r4', 8))
    A("v_sub_f32 v24, v24, v25"); A("v_exp_f32 v24, v24"); A("v_mul_f32 v24, v24, v22")
    xreduce("v_add_f32", 24, 0, 0, ('r4', 8))
    A("v_readlane_b32 s72, v25, 0"); A("v_readlane_b32 s73, v24, 1"); A("v_readlane_b32 s74, v25, 2"); A("v_readlane_b32 s75, v24, 3")
    A("v_bfe_u32 v10, v0, 2, 1"); A("v_cmp_eq_u32 vcc, 1, v10")
    A("v_mov_b32 v24, s72"); A("v_mov_b32 v25, s74"); A("v_cndmask_b32 v24, v24, v25, vcc")
    A("v_mov_b32 v25, s73"); A("v_mov_b32 v26, s75"); A("v_cndmask_b32 v25, v25, v26, vcc")
    A("v_sub_f32 v16, v16, v24"); A("v_exp_f32 v16, v16"); A("v_rcp_f32 v25, v25"); A("v_mul_f32 v16, v16, v25")
    A("v_lshlrev_b32 v9, 2, v8"); A(f"v_add_u32 v9, {L_F}, v9")
    A("ds_write_b32 v9, v16")
    stamp(2)
    A("s_branch L_hpre")
    e.label("L_h3")
    if iso: A("s_branch L_end")
    if pw:
        A("s_lshl_b32 s10, s9, 19")
        srd(40, 18, 19, 0x80000, "s10"); srd(44, 20, 21, 0x80000, "s10")
        A(f"v_mul_u32_u24 v8, {pw}, v0"); A(f"v_add_u32 v8, {pw - 128}, v8")
        setexec((1 << (0x80000 // pw)) - 1)
        A("buffer_load_dword v16, v8, s[40:43], 0 offen nt")
        A("buffer_load_dword v17, v8, s[44:47], 0 offen nt")
        A("s_mov_b64 exec, -1")
    A("s_mul_i32 s85, s7, 7"); A("s_add_u32 s85, s85, s4")
    A("s_mul_i32 s84, s6, 28"); A("s_add_u32 s84, s84, s85")
    A("s_cmp_eq_u32 s4, 7"); A("s_cbranch_scc1 L_hpre")
    srd(44, 16, 17, 7168)
    A("v_and_b32 v12, 7, v0"); A("v_lshlrev_b32 v12, 2, v12"); A("s_lshl_b32 s11, s84, 5"); A("v_add_u32 v12, s11, v12")
    A("buffer_load_dword v13, v12, s[44:47], 0 offen")
    A("s_lshr_b32 s75, s85, 2"); A("s_lshl_b32 s75, s75, 3"); A("s_add_u32 s75, s75, s6"); A(f"s_mul_i32 s75, s75, {LS}"); A(f"s_add_u32 s75, s75, {FM}")
    A("s_sleep 127")
    flag_poll("ff", "s75", 8, 16, 18, 2 * hsleep)
    A("v_lshrrev_b32 v8, 3, v0"); A("v_mul_u32_u24 v8, 14336, v8"); A("v_and_b32 v9, 7, v0"); A("v_lshl_add_u32 v8, v9, 3, v8")
    A("s_lshl_b32 s10, s84, 6"); A(f"s_add_u32 s10, s10, {FWS}")
    A(f"buffer_load_dwordx2 v[16:17], v8, s[48:51], s10 offen {gflag}")
    A("s_waitcnt vmcnt(0)")
    for st_ in (8, 16, 32):
        xreduce("v_add_f32", 16, 8, 9, (st_,)); xreduce("v_add_f32", 17, 10, 11, (st_,))
    A(f"s_mov_b32 s72, {f32(-math.log2(math.e))}")
    for (f, g) in ((16, 14), (17, 15)):
        bf16r(f"v{f}", f"v{f}")
        A(f"v_mul_f32 v8, s72, v{f}"); A("v_exp_f32 v8, v8"); A("v_add_f32 v8, 1.0, v8"); A("v_rcp_f32 v8, v8")
        A(f"v_mul_f32 v{g}, v{f}, v8"); bf16r(f"v{g}", f"v{g}")
    stamp(1)

    e.label("L_hpre")
    if iso: A("s_branch L_end")
    combine_setup(VPOS, VKO, VF)
    A("v_lshlrev_b32 v40, 16, v3"); A("v_lshl_add_u32 v40, v6, 4, v40")
    A("s_lshl_b32 s76, s4, 13"); A("s_lshl_b32 s72, s15, 11"); A("s_add_u32 s76, s76, s72"); A("s_lshl_b32 s72, s6, 8"); A("s_add_u32 s76, s76, s72")
    A(f"s_add_u32 s76, s76, {OWS}"); A("s_add_u32 s77, s76, 0x40000")
    A("v_lshlrev_b32 v42, 7, v3"); A("v_lshl_add_u32 v42, v6, 3, v42"); A("s_lshl_b32 s72, s15, 10"); A(f"s_add_u32 s72, s72, {L_A}"); A("v_add_u32 v42, s72, v42")
    A("v_and_b32 v8, 7, v0"); A("v_lshlrev_b32 v43, 7, v8"); A("v_lshl_add_u32 v43, v3, 4, v43"); A(f"v_add_u32 v43, {L_A}, v43")
    A("v_lshl_add_u32 v44, v3, 3, v4"); A("v_lshlrev_b32 v44, 8, v44"); A("v_lshl_add_u32 v44, v5, 3, v44")
    A("s_lshl_b32 s72, s15, 5"); A(f"s_add_u32 s72, s72, {L_WO}"); A("v_add_u32 v44, s72, v44")
    A("v_and_b32 v8, 1, v3"); A("v_lshlrev_b32 v8, 2, v8"); A("v_lshrrev_b32 v9, 1, v3"); A("v_lshl_add_u32 v8, v9, 1, v8")
    A("s_mov_b32 s72, 229376"); A("v_mul_lo_u32 v45, v8, s72"); A("v_lshl_add_u32 v45, v6, 3, v45")
    A("s_mul_i32 s72, s7, 7"); A("s_add_u32 s72, s72, s15"); A("s_lshl_b32 s72, s72, 6"); A("s_lshl_b32 s73, s4, 3"); A("s_add_u32 s72, s72, s73")
    A("s_add_u32 s72, s72, s6"); A("s_lshl_b32 s72, s72, 7"); A(f"s_add_u32 s79, s72, {YWS}"); A("s_add_u32 s78, s79, 32768")
    A("v_add_u32 v46, 229376, v45")
    A("s_mov_b32 s60, 0"); A("s_mov_b32 s61, -1")
    A(f"v_mul_u32_u24 v47, {LS}, v0")
    A(f"s_mul_i32 s68, s7, {8*LS}"); A(f"s_add_u32 s68, s68, {YM}"); A("s_lshl_b32 s72, s4, 3"); A("s_add_u32 s72, s72, s6"); A("s_lshl_b32 s72, s72, 2"); A("s_add_u32 s69, s68, s72")

    e.label("L_bar2")
    A("v_mov_b32 v36, s57"); A("v_mov_b32 v21, s56")
    A(f"v_add_u32 v35, {2*KOVS}, v{VPOS}")
    A("s_mov_b32 s62, 0x55555555"); A("s_mov_b32 s63, 0x55555555")
    A("s_waitcnt lgkmcnt(0)")
    A("s_barrier")
    A(f"ds_read_b128 v[24:27], v{VF}")
    A(f"ds_read_b32 v16, v{VPOS}"); A(f"ds_read_b32 v17, v{VPOS} offset:{KOVS}")
    A(f"ds_read_b32 v18, v35"); A(f"ds_read_b32 v19, v35 offset:{KOVS}")
    A("s_waitcnt lgkmcnt(0)")
    A("v_mul_f32 v16, v16, v24"); A("v_mul_f32 v18, v18, v26"); A("v_fmac_f32 v16, v17, v25"); A("v_fmac_f32 v18, v19, v27"); A("v_add_f32 v16, v16, v18")
    A(f"v_mov_b32_dpp v17, v16 quad_perm:[1,1,3,3] {DPP}")
    A("v_cvt_pk_bf16_f32 v20, v16, v17")
    A("s_mov_b64 exec, s[62:63]")
    A(f"buffer_store_dwordx2 v[20:21], v{VKO}, s[48:51], 0 offen sc1")
    A("s_mov_b64 exec, -1")
    stamp(4)
    A("s_cmp_lt_u32 s3, 4"); A("s_cbranch_scc1 L_exit")
    for c2 in range(2):
        for ks in range(2):
            r = 64 + 8 * c2 + 4 * ks
            A(f"ds_read_b64_tr_b16 v[{r}:{r+1}], v44 offset:{ks*8192 + c2*128}")
            A(f"ds_read_b64_tr_b16 v[{r+2}:{r+3}], v44 offset:{ks*8192 + c2*128 + 1024}")
    A("s_cmp_lg_u32 s3, 4"); A("s_cbranch_scc1 L_owait")
    A("s_lshl_b32 s75, s4, 2"); A("s_lshr_b32 s72, s5, 3"); A("s_add_u32 s75, s75, s72"); A(f"s_mul_i32 s75, s75, {LS}"); A(f"s_add_u32 s75, s75, {OM}")
    hint_poll("oh", "s75", 32, 48, 49, osleep)
    A("v_mov_b32 v48, 1"); A("ds_write_b32 v2, v48 offset:4")
    A("s_branch L_ogo")
    e.label("L_owait")
    lds_wait("ow", 2, 4, 48, 1, tgt="L_ogo")
    e.label("L_ogo")
    def oloads():
        A("buffer_load_dwordx4 v[16:19], v40, s[48:51], s76 offen sc1")
        A("buffer_load_dwordx4 v[20:23], v40, s[48:51], s77 offen sc1")
    poll("opoll", oloads, lambda: check32([17, 19, 21, 23], 48, 49), sleep=tsleep)
    A("ds_write2_b32 v42, v16, v18 offset0:0 offset1:1"); A("ds_write2_b32 v42, v20, v22 offset0:128 offset1:129")
    A("s_cmp_lg_u32 s3, 4"); A("s_cbranch_scc1 L_noyh")
    A("v_mov_b32 v48, s56")
    A("s_mov_b64 exec, 0xff")
    A("buffer_store_dword v48, v47, s[48:51], s69 offen sc1")
    A("s_mov_b64 exec, -1")
    e.label("L_noyh")
    stamp(5)
    A("s_waitcnt lgkmcnt(0)")
    A("s_barrier")
    for sp in range(4):
        for ks in range(2):
            r = 80 + 8 * sp + 4 * ks
            A(f"ds_read_b128 v[{r}:{r+3}], v43 offset:{sp*1024+ks*64}")
    n = 0
    for sp in range(4):
        for ks in range(2):
            r = 80 + 8 * sp + 4 * ks
            A(f"s_waitcnt lgkmcnt({7-n})"); n += 1
            for c2 in range(2):
                D = 24 + 4 * c2
                C = "0" if (sp == 0 and ks == 0) else f"v[{D}:{D+3}]"
                A(f"v_mfma_f32_16x16x32_bf16 v[{D}:{D+3}], v[{r}:{r+3}], v[{64+8*c2+4*ks}:{67+8*c2+4*ks}], {C}")
    A("v_mov_b32 v17, s56"); A("v_mov_b32 v19, s56"); A("v_mov_b32 v21, s56"); A("v_mov_b32 v23, s56")
    for c2 in range(2):
        D = 24 + 4 * c2; t = 16 + 4 * c2
        A(f"v_cndmask_b32 v{t}, v{D}, v{D+2}, s[60:61]"); A(f"v_cndmask_b32 v{t+2}, v{D+1}, v{D+3}, s[60:61]")
        A(f"v_and_or_b32 v{t}, v{t}, s59, v36"); A(f"v_and_or_b32 v{t+2}, v{t+2}, s59, v36")
        if c2 == 1:
            A("s_cmp_eq_u32 s3, 7"); A("s_cbranch_scc1 L_ydone")
        so = "s79" if c2 == 0 else "s78"
        A(f"buffer_store_dwordx2 v[{t}:{t+1}], v45, s[48:51], {so} offen sc1")
        A(f"buffer_store_dwordx2 v[{t+2}:{t+3}], v46, s[48:51], {so} offen sc1")
    stamp(6)
    A("s_branch L_exit")
    e.label("L_ydone")
    stamp(6)
    A("s_cmp_eq_u32 s4, 7"); A("s_cbranch_scc1 L_fin")
    A("s_lshl_b32 s10, s84, 13"); A(f"s_add_u32 s10, s10, {YWS}"); A("s_add_u32 s11, s10, 4096")
    srd(44, 32, 33, 7168)
    def yloads():
        for i in range(8):
            A(f"buffer_load_dwordx4 v[{16+4*i}:{19+4*i}], v7, s[48:51], s{10+(i>>2)} offen offset:{(i&3)*1024} sc1")
    A(f"s_mul_i32 s75, s6, {LS}"); A("s_add_u32 s75, s75, s68")
    hint_poll("yh", "s75", 64, 48, 49, osleep)
    poll("ypoll", yloads, lambda: check40([(16 + 2 * i, 17 + 2 * i) for i in range(16)], 48, 49, 50, 51), sleep=tsleep)
    for i in range(16): A(f"v_and_b32 v{16+2*i}, s59, v{16+2*i}")
    for o in (0, 2):
        A(f"v_add_f32 v{16+o}, v{16+o}, v{20+o}"); A(f"v_add_f32 v{24+o}, v{24+o}, v{28+o}"); A(f"v_add_f32 v{32+o}, v{32+o}, v{36+o}"); A(f"v_add_f32 v{40+o}, v{40+o}, v{44+o}")
    for o in (0, 2):
        A(f"v_add_f32 v{16+o}, v{16+o}, v{24+o}"); A(f"v_add_f32 v{32+o}, v{32+o}, v{40+o}")
    for o in (0, 2): A(f"v_add_f32 v{16+o}, v{16+o}, v{32+o}")
    for st_ in (8, 16, 32):
        xreduce("v_add_f32", 16, 8, 9, (st_,)); xreduce("v_add_f32", 18, 10, 11, (st_,))
    bf16r("v16", "v16"); bf16r("v18", "v18")
    A("v_mul_f32 v16, v16, v14"); A("v_mul_f32 v18, v18, v15")
    bf16r("v16", "v16"); bf16r("v18", "v18")
    A("v_lshlrev_b32 v8, 16, v13"); A("v_and_b32 v9, 0xffff0000, v13")
    A("v_add_f32 v16, v16, v8"); A("v_add_f32 v18, v18, v9")
    A("v_cvt_pk_bf16_f32 v16, v16, v18")
    A("s_mov_b64 exec, 0xff")
    A("buffer_store_dword v16, v12, s[44:47], 0 offen")
    A("s_mov_b64 exec, -1")
    A("s_cmp_lg_u32 s2, 0"); A("s_cbranch_scc1 L_fin")
    A("s_add_u32 s72, s38, 1"); A("s_add_u32 s73, s39, 1"); A("s_add_u32 s74, s52, 1"); A("s_add_u32 s75, s53, 1")
    A("v_mov_b32 v16, s72"); A("v_mov_b32 v17, s73"); A("v_mov_b32 v18, s74"); A("v_mov_b32 v19, s75"); A("v_mov_b32 v20, 0"); A(f"v_mov_b32 v21, {FAR}")
    A("s_mov_b64 exec, 1")
    A("buffer_store_dwordx2 v[16:17], v20, s[48:51], 0 offen")
    A("buffer_store_dwordx2 v[18:19], v21, s[48:51], 0 offen")
    A("s_mov_b64 exec, -1")
    e.label("L_fin")
    if stamps: A("s_waitcnt vmcnt(0)")
    stamp(7)
    e.label("L_exit")
    if stamps:
        A("s_waitcnt vmcnt(0)")
        A("s_mov_b64 exec, 1")
        A("s_lshl_b32 s14, s2, 3"); A("s_add_u32 s14, s14, s3"); A("s_lshl_b32 s14, s14, 7"); A("s_add_u32 s14, s14, 0x10100000"); A("v_mov_b32 v1, s14")
        for q in range(4):
            for i in range(4): A(f"v_mov_b32 v{8+i}, s{86+4*q+i}")
            A(f"global_store_dwordx4 v1, v[8:11], s[36:37] offset:{q*16}")
        A("s_cmp_lg_u32 s3, 7"); A("s_cbranch_scc1 L_end")
        A("v_mov_b32 v8, s86"); A("v_mov_b32 v9, s87"); A("v_mov_b32 v10, s100"); A("v_mov_b32 v11, s101")
        A("s_lshl_b32 s14, s2, 4"); A("s_add_u32 s14, s14, 0x10000000"); A("v_mov_b32 v1, s14")
        A("global_store_dwordx4 v1, v[8:11], s[36:37]")
    e.label("L_end")
    A("s_endpgm")
    e.raw('.section .rodata,"a"'); e.raw(".p2align 6"); e.raw(f".amdhsa_kernel {KN}")
    e.raw("  .amdhsa_next_free_vgpr 256"); e.raw("  .amdhsa_next_free_sgpr 102"); e.raw("  .amdhsa_accum_offset 256")
    e.raw("  .amdhsa_group_segment_fixed_size 0"); e.raw("  .amdhsa_kernarg_size 88"); e.raw("  .amdhsa_user_sgpr_count 2")
    e.raw("  .amdhsa_user_sgpr_kernarg_segment_ptr 1"); e.raw("  .amdhsa_system_sgpr_workgroup_id_x 1"); e.raw(".end_amdhsa_kernel")
    assert e.maxv <= 256 and e.maxs <= 102, (e.maxv, e.maxs)
    return e.text()

if __name__ == "__main__":
    out = sys.argv[1]
    kw = eval("dict(" + (sys.argv[2] if len(sys.argv) > 2 else "") + ")")
    open(out, "w").write(gen(**kw))
```

```python
import gen3
body = gen3.gen()
hdr = """; Fused decode layer: out = x + (GQA-attention(LN(x)) @ wo) * silu(relu(LN(x) @ w1) @ w2)
"""
open('recurrent_scan__gqa_block_cached__dense_activation_relu__decode.s','w').write(hdr + body)
```
